```python
import torch

def _softmax(x, axis=-1):
    return torch.softmax(x, dim=axis)
def _gelu(x):
    return torch.nn.functional.gelu(x, approximate="tanh")
def _silu(x):
    return torch.nn.functional.silu(x)
def _sigmoid(x):
    return torch.sigmoid(x)
def _layernorm(x, axis=-1, eps=1e-5):
    m = x.mean(dim=axis, keepdim=True)
    v = x.var(dim=axis, keepdim=True, unbiased=False)
    return (x - m) / torch.sqrt(v + eps)
def _scatter_add(tgt, idx, src, axis=0):
    return tgt.clone().index_add_(axis, idx, src)
def _segment_sum(src, seg, n):
    out = torch.zeros((n,) + src.shape[1:], dtype=src.dtype)
    return out.index_add_(0, seg, src)
def _pad(x, pw):
    flat = tuple(v for pair in reversed(pw) for v in pair)
    return torch.nn.functional.pad(x, flat)

kernel_name = 'parallel_sum__compressed_kv_cla__moe_arch_mod__prompt'

def setup_inputs():

    _w = (lambda a: (lambda t: t.to(torch.bfloat16) if t.is_floating_point() else t)(torch.as_tensor(a)))
    def _A_setup():
        B, H, Sq, Sk, D, M = 1, 32, 2048, 2048, 128, 512
        Dc = 4 * D
        return {
            "x": _w((lambda *s: torch.randn(*s, dtype=torch.bfloat16) * 0.05)(B, Sq, M)),
            "c_kv": _w((lambda *s: torch.randn(*s, dtype=torch.bfloat16) * 1.6)(B, Sk, Dc)),
            "w_q": _w((lambda *s: torch.randn(*s, dtype=torch.bfloat16) * 0.8)(M, H, D) * (M ** -0.5)),
            "w_uk": _w((lambda *s: torch.randn(*s, dtype=torch.bfloat16) * 0.8)(Dc, H, D) * (Dc ** -0.5)),
            "w_uv": _w((lambda *s: torch.randn(*s, dtype=torch.bfloat16) * 1.6)(Dc, H, D) * (Dc ** -0.5)),
            "w_o": _w((lambda *s: torch.randn(*s, dtype=torch.bfloat16) * 1.6)(H, D, M) * ((H * D) ** -0.5)),
        }
    _A_in = _A_setup()

    def _B_setup():
        B, S, D, F, C = 1, 2048, 512, 1376, 8
        return {
            "x": _w((lambda *s: torch.randn(*s, dtype=torch.bfloat16) * 0.05)(B, S, D)),
            "w_r": _w((lambda *s: torch.randn(*s, dtype=torch.bfloat16) * 0.05)(D)),
            "w_gate": _w((lambda *s: torch.randn(*s, dtype=torch.bfloat16) * 0.05)(D, F)),
            "w_up": _w((lambda *s: torch.randn(*s, dtype=torch.bfloat16) * 0.05)(D, F)),
            "w_down": _w((lambda *s: torch.randn(*s, dtype=torch.bfloat16) * 0.05)(F, D)),
        }
    _B_in = _B_setup()

    return {
        "A_x": _A_in["x"],
        "A_c_kv": _A_in["c_kv"],
        "A_w_q": _A_in["w_q"],
        "A_w_uk": _A_in["w_uk"],
        "A_w_uv": _A_in["w_uv"],
        "A_w_o": _A_in["w_o"],
        "B_x": _B_in["x"],
        "B_w_r": _B_in["w_r"],
        "B_w_gate": _B_in["w_gate"],
        "B_w_up": _B_in["w_up"],
        "B_w_down": _B_in["w_down"],
    }

def reference(A_x, A_c_kv, A_w_q, A_w_uk, A_w_uv, A_w_o, B_x, B_w_r, B_w_gate, B_w_up, B_w_down):
    def _A_ref(x, c_kv, w_q, w_uk, w_uv, w_o):
        B, Sq, M = x.shape[0], x.shape[1], x.shape[2]
        Sk = c_kv.shape[1]
        H, D = w_q.shape[1], w_q.shape[2]
        q = torch.einsum("bqm,mhd->bhqd", x, w_q)
        k = torch.einsum("bkc,chd->bhkd", c_kv, w_uk)
        v = torch.einsum("bkc,chd->bhkd", c_kv, w_uv)
        scores = torch.einsum("bhqd,bhkd->bhqk", q, k) * (D ** -0.5)
        off = Sk - Sq
        qi = torch.arange(Sq)[:, None]
        kj = torch.arange(Sk)[None, :]
        cmask = kj <= (qi + off)
        scores = torch.where(cmask[None, None], scores, -1e9)
        p = _softmax(scores, axis=-1)
        ctx = torch.einsum("bhqk,bhkd->bhqd", p, v)
        return torch.einsum("bhqd,hdm->bqm", ctx, w_o)

    def _B_ref(x, w_r, w_gate, w_up, w_down):
        B, S, D = x.shape
        C = 8
        r = x @ w_r
        idx = torch.argsort(-r, axis=-1)[:, :C]
        idx_e = (lambda x, n, axis: torch.repeat_interleave(x, n, dim=axis))(idx.reshape(B, C, 1), D, axis=2)
        x_sel = (lambda x, i, axis: torch.take_along_dim(x, i, dim=axis))(x, idx_e, axis=1)
        g = _silu(x_sel @ w_gate)
        u = x_sel @ w_up
        y = (g * u) @ w_down
        r_sel = _sigmoid((lambda x, i, axis: torch.take_along_dim(x, i, dim=axis))(r, idx, axis=1))
        y = y * r_sel.reshape(B, C, 1)
        b_off = (torch.arange(B) * S).reshape(B, 1)
        flat_idx = (idx + b_off).reshape(B * C)
        zero = (x * 0.0).reshape(B * S, D)
        upd = _scatter_add(zero, flat_idx, y.reshape(B * C, D), axis=0)
        return x + upd.reshape(B, S, D)

    x = A_x
    xn = _layernorm(x, axis=-1)
    return x + _A_ref(xn, A_c_kv, A_w_q, A_w_uk, A_w_uv, A_w_o) + _B_ref(xn, B_w_r, B_w_gate, B_w_up, B_w_down)
```

```python
import re

def vr(i, n=1, p="v"):
    return f"{p}{i}" if n == 1 else f"{p}[{i}:{i+n-1}]"
def v4(i): return vr(i, 4, "v")
def a4(i): return vr(i, 4, "a")
def v2(i): return vr(i, 2, "v")
def s4(i): return f"s[{i}:{i+3}]"
def s2(i): return f"s[{i}:{i+1}]"

MFMA = "v_mfma_f32_16x16x32_bf16"

class Em:
    def __init__(self):
        self.L = []
        self.vm = []
        self.lg = []
    def e(self, s):
        for line in s.split("\n"):
            line = line.strip()
            if line:
                self.L.append(line)
    def vmem(self, s, tag=None):
        self.e(s); self.vm.append(tag)
    def lds(self, s, tag=None):
        self.e(s); self.lg.append(tag)
    def _cnt(self, q, tags):
        last = -1
        for i, t in enumerate(q):
            if t in tags: last = i
        return len(q) - 1 - last, last
    def wait_vm(self, *tags, emit=True):
        n, last = self._cnt(self.vm, tags)
        if last < 0: return None
        self.vm = self.vm[last + 1:]
        assert n <= 63, n
        s = f"s_waitcnt vmcnt({n})"
        if emit: self.e(s)
        return s
    def wait_lg(self, *tags, emit=True):
        n, last = self._cnt(self.lg, tags)
        if last < 0: return None
        self.lg = self.lg[last + 1:]
        if n > 15: n = 15
        s = f"s_waitcnt lgkmcnt({n})"
        if emit: self.e(s)
        return s
    def wait_all(self):
        self.e("s_waitcnt vmcnt(0) lgkmcnt(0)"); self.vm = []; self.lg = []
    def text(self):
        out = []
        for l in self.L:
            if l.endswith(":") or l.startswith("."):
                out.append(l)
            else:
                out.append("    " + l)
        return "\n".join(out) + "\n"

_reg = re.compile(r"^(-|abs\()?([vas])(\d+)\)?$")
_rng = re.compile(r"^(-|abs\()?([vas])\[(\d+):(\d+)\]\)?$")
def regs(op):
    op = op.strip()
    m = _reg.match(op)
    if m: return {(m.group(2), int(m.group(3)))}
    m = _rng.match(op)
    if m: return {(m.group(2), i) for i in range(int(m.group(3)), int(m.group(4)) + 1)}
    if op == "vcc": return {("s", 106), ("s", 107)}
    if op == "vcc_lo": return {("s", 106)}
    if op == "vcc_hi": return {("s", 107)}
    if op == "m0": return {("s", 124)}
    if op == "exec": return {("s", 126), ("s", 127)}
    return set()

TRANS = ("v_exp_f32", "v_log_f32", "v_rcp_f32", "v_rsq_f32", "v_sqrt_f32", "v_sin_f32", "v_cos_f32")

def parse(line):
    line = line.split(";")[0].strip()
    if not line or line.endswith(":") or line.startswith("."): return None
    parts = line.split(None, 1)
    mn = parts[0]
    ops = []
    if len(parts) > 1:
        cur = ""; d = 0
        for ch in parts[1]:
            if ch == "[": d += 1
            if ch == "]": d -= 1
            if ch == "," and d == 0:
                ops.append(cur.strip()); cur = ""
            else: cur += ch
        ops.append(cur.strip())
    mods = ""
    if ops:
        sp = ops[-1].split(None, 1)
        if len(sp) > 1: ops[-1] = sp[0]; mods = sp[1]
    I = dict(mn=mn, ops=ops, mods=mods, line=line, w=set(), r=set(), cls="other")
    R = [regs(o) for o in ops]
    if mn.startswith("v_mfma"):
        I["cls"] = "mfma"; I["w"] = R[0]; I["ra"] = R[1] | R[2]; I["rc"] = R[3]; I["r"] = R[1] | R[2] | R[3]
        I["passes"] = 4 if "16x16x32" in mn else 8
    elif mn.startswith("v_"):
        I["cls"] = "valu"
        if mn.startswith("v_cmp"):
            I["w"] = R[0]; I["r"] = set().union(*R[1:])
        elif mn.startswith("v_permlane") and "swap" in mn:
            I["w"] = R[0] | R[1]; I["r"] = R[0] | R[1]
        elif mn.startswith(("v_add_co", "v_sub_co", "v_addc_co", "v_subb_co", "v_div_scale", "v_mad_u64")):
            I["w"] = R[0] | R[1]; I["r"] = set().union(*R[2:])
        else:
            I["w"] = R[0]; I["r"] = set().union(*R[1:]) if len(R) > 1 else set()
            if mn.startswith(("v_fmac", "v_dot2c", "v_writelane")) or "dpp" in mn or "row_" in mods or "quad_perm" in mods:
                I["r"] |= R[0]
            if mn.startswith("v_cndmask") and len(ops) == 3: I["r"] |= regs("vcc")
        I["trans"] = mn.replace("_e32", "").replace("_e64", "") in TRANS
        I["dpp"] = ("row_" in mods or "quad_perm" in mods or "dpp" in mn)
    elif mn.startswith(("buffer_", "global_")):
        I["cls"] = "vmem"
        if "store" in mn or "atomic" in mn:
            I["r"] = set().union(*R); I["sdata"] = R[0] if mn.startswith("buffer_") else R[1]
            I["wide"] = ("x4" in mn or "x3" in mn)
        elif "lds" in mods.split() or "_lds_" in mn:
            I["r"] = set().union(*R) | regs("m0"); I["dma"] = True
        else:
            I["w"] = R[0]; I["r"] = set().union(*R[1:])
    elif mn.startswith("ds_"):
        I["cls"] = "ds"
        if "write" in mn:
            I["r"] = set().union(*R)
        else:
            I["w"] = R[0]; I["r"] = set().union(*R[1:])
    elif mn.startswith("s_"):
        I["cls"] = "salu"
        if mn.startswith(("s_cmp", "s_cbranch", "s_branch", "s_waitcnt", "s_barrier", "s_nop", "s_endpgm", "s_setprio", "s_bitcmp", "s_sleep")):
            I["r"] = set().union(*R) if R else set()
        else:
            I["w"] = R[0] if R else set(); I["r"] = set().union(*R[1:]) if len(R) > 1 else set()
            if "saveexec" in mn: I["w"] |= regs("exec")
    return I

def check(lines, name=""):
    ins = [p for p in (parse(l) for l in lines) if p]
    pos = []; t = 0
    for I in ins:
        pos.append(t)
        if I["mn"] == "s_nop": t += int(I["ops"][0], 0) + 1
        else: t += 1
    probs = []
    isv = lambda S: {x for x in S if x[0] in "va"}
    iss = lambda S: {x for x in S if x[0] == "s"}
    for j, J in enumerate(ins):
        for i in range(j - 1, max(-1, j - 24), -1):
            I = ins[i]
            d = pos[j] - pos[i] - 1
            if I["mn"] == "s_nop": d = d
            need = 0; why = ""
            if I["cls"] == "valu":
                wv = isv(I["w"]); ws = iss(I["w"])
                if J["cls"] == "mfma" and wv & J["r"]: need, why = 2, "valu->mfma"
                if J["cls"] == "valu":
                    if J.get("dpp") and wv & J["r"]: need, why = max(need, 2), "valu->dpp"
                    if J["mn"].startswith("v_permlane") and wv & J["r"]: need, why = max(need, 2), "valu->permlane"
                    if J["mn"].startswith(("v_readlane", "v_readfirstlane")) and wv & J["r"]: need, why = max(need, 1), "valu->readlane"
                    if I.get("trans") and not J.get("trans") and wv & J["r"]: need, why = max(need, 1), "trans->valu"
                    if ws & J["r"]:
                        if J["mn"].startswith(("v_readlane", "v_writelane")): need, why = max(need, 4), "valu sgpr->lane sel"
                        else: need, why = max(need, 2), "valu sgpr->valu"
                if J["cls"] == "vmem" and ws & J["r"]: need, why = max(need, 5), "valu sgpr->vmem"
                if I.get("trans") and J["cls"] in ("vmem", "ds", "mfma") and wv & J["r"]: need, why = max(need, 2), "trans->other"
            if I["cls"] == "mfma":
                p = I["passes"]
                tab_rd = {4: 8, 8: 12}[p]; tab_c = {4: 6, 8: 10}[p]; tab_war = {4: 3, 8: 7}[p]
                if J["cls"] == "mfma":
                    if I["w"] & J["ra"]: need, why = max(need, tab_rd), "mfma D->AB"
                    if I["w"] & J["rc"] and I["w"] != J["rc"]: need, why = max(need, tab_c), "mfma D->C overlap"
                    if I["w"] & J["w"] and I["w"] != J["rc"]: need, why = max(need, tab_rd), "mfma WAW (conservative)"
                elif J["cls"] in ("valu", "vmem", "ds"):
                    if I["w"] & (J["r"] | J["w"]): need, why = max(need, tab_rd), "mfma D->valu/mem"
                    if J["cls"] == "valu" and I["rc"] & J["w"]: need, why = max(need, tab_war), "mfma C WAR"
            if I["cls"] == "vmem" and I.get("wide") and (I["sdata"] & J["w"]):
                need, why = max(need, 2), "store data WAR"
            if I["cls"] == "salu" and ("s", 124) in I["w"] and J.get("dma"): need, why = max(need, 1), "m0->dma"
            if need > d:
                probs.append(f"{name}: {why}: need {need} have {d}: [{I['line']}] -> [{J['line']}]")
    return probs

def kd(name, vgpr, accum, sgpr=102):
    return f""".section .rodata,"a"
.p2align 6
.amdhsa_kernel {name}
  .amdhsa_next_free_vgpr {vgpr}
  .amdhsa_next_free_sgpr {sgpr}
  .amdhsa_accum_offset {accum}
  .amdhsa_group_segment_fixed_size 0
  .amdhsa_kernarg_size 112
  .amdhsa_user_sgpr_count 2
  .amdhsa_user_sgpr_kernarg_segment_ptr 1
  .amdhsa_system_sgpr_workgroup_id_x 1
  .amdhsa_float_denorm_mode_32 3
  .amdhsa_float_denorm_mode_16_64 3
.end_amdhsa_kernel
"""

def srd(E, d, base, size):
    E.e(f"s_mov_b32 s{d}, s{base}")
    E.e(f"s_and_b32 s{d+1}, s{base+1}, 0xffff")
    E.e(f"s_mov_b32 s{d+2}, {hex(size)}")
    E.e(f"s_mov_b32 s{d+3}, 0x20000")

class Weave:
    def __init__(self):
        self.bb = []; self.post = []; self.prev = []
    def mf(self, s):
        self.bb.append(s); self.post.append([]); self.prev.append([]); return len(self.bb) - 1
    def add(self, slot, item): self.post[slot].append(item)
    def pre(self, slot, item): self.prev[slot].append(item)
    def emit(self, E):
        for i, m in enumerate(self.bb):
            for it in self.prev[i]:
                it(E) if callable(it) else E.e(it)
            E.e(m)
            for it in self.post[i]:
                it(E) if callable(it) else E.e(it)
```

```python
from asmlib import *

WS_XN   = 0x0000000
WS_RS   = 0x0200000
WS_IDX  = 0x0208000
WS_UPD  = 0x0210000
WS_YP   = 0x0220000
NP      = 43
WS_WOF  = 0x0400000
WS_K    = 0x1000000
WS_V    = 0x2000000
WS_CTX  = 0x3000000
WS_SIZE = 0x10000000

import struct, math
SCALE_BITS = struct.unpack("<I", struct.pack("<f", math.log2(math.e) / math.sqrt(128.0)))[0]

class Stream:
    def __init__(self, W, lead, age=10, maxper=1):
        self.W = W; self.lead = lead; self.age = age; self.maxper = maxper
        self.reads = []
        self.latest = {}
    def read(self, tag, texts, first_use, earliest=-10**9, lead=None, latest=10**9):
        self.reads.append((tag, texts, first_use, earliest, lead if lead is not None else self.lead))
        self.latest[tag] = latest
    def place(self, E, load=None):
        W = self.W
        n = len(W.bb)
        cnt = [0] * n
        cur = -10**9
        issue = {}
        for tag, texts, fu, ea, lead in self.reads:
            for k, tx in enumerate(texts):
                s = max(fu - lead + k, ea, cur)
                if s >= 0:
                    while cnt[s] >= self.maxper and s < fu - 3: s += 1
                    assert s < fu, (tag, s, fu)
                    cnt[s] += 1
                    W.add(s, (lambda tx, tag: (lambda E: E.lds(tx, tag)))(tx, tag))
                else:
                    E.lds(tx, tag)
                cur = s
                issue[tag] = s
                assert s < self.latest[tag], (tag, s, self.latest[tag])
        order = [r[0] for r in self.reads]
        covered = set()
        for idx, (tag, texts, fu, ea, lead) in sorted(enumerate(self.reads), key=lambda x: (x[1][2], x[0])):
            if tag in covered: continue
            last = idx
            for k in range(idx + 1, len(order)):
                if issue[order[k]] <= fu - self.age: last = k
                else: break
            for k in range(0, last + 1): covered.add(order[k])
            W.pre(fu, (lambda t: (lambda E: E.wait_lg(t)))(order[last]))

def wave_sum2(E, regs, tmp):
    for mod in ("quad_perm:[1,0,3,2]", "quad_perm:[2,3,0,1]", "row_half_mirror", "row_mirror"):
        if len(regs) < 3: E.e(f"s_nop {2 - len(regs)}" if len(regs) < 3 else "")
        for r in regs:
            E.e(f"v_add_f32_dpp v{r}, v{r}, v{r} {mod} row_mask:0xf bank_mask:0xf")
    for sw in ("v_permlane16_swap_b32", "v_permlane32_swap_b32"):
        for r, t in zip(regs, tmp):
            E.e(f"v_mov_b32 v{t}, v{r}")
        E.e("s_nop 1")
        for r, t in zip(regs, tmp):
            E.e(f"{sw} v{r}, v{t}")
        E.e("s_nop 0")
        for r, t in zip(regs, tmp):
            E.e(f"v_add_f32 v{r}, v{r}, v{t}")

def head(name):
    return f".text\n.globl {name}\n.p2align 8\n.type {name},@function\n{name}:\n"
```

```python
from common import *

def gen_k1(name="k1_kernel", stflag=""):
    E = Em()
    SX, SCK, SWK, SWV, SWO, SWR, SWS = 20, 24, 28, 32, 36, 40, 44
    sW, sH, sRT = 48, 49, 50
    sCK0, sWo, sM, sT, sT2, sKst, sVst = 51, 52, 53, 54, 55, 56, 57
    sCKl, sWl, sUl = 58, 59, 60
    sWv = 61
    sSc = 63
    ACC1, ACC2, WF = 0, 128, 192
    vW = 224
    vA0, vA1 = 236, 237
    vCK = 238
    vWD = 242
    vL16, vLane = 246, 247
    vT = 248
    NWF = 8
    KT = lambda c, a: ACC1 + (c * 4 + a) * 4
    CF = lambda a, kb: (kb * 4 + a) * 4
    L_W = lambda slot: slot * 16384
    L_SP = 49152
    L_CK = 65536

    E.e("s_cmp_ge_u32 s2, 256")
    E.e(f"s_cbranch_scc1 {name}_end")
    E.e("s_load_dwordx4 s[4:7], s[0:1], 0")
    E.e("s_load_dwordx4 s[8:11], s[0:1], 16")
    E.e("s_load_dwordx4 s[12:15], s[0:1], 32")
    E.e("s_load_dwordx2 s[16:17], s[0:1], 56")
    E.e("s_load_dwordx2 s[18:19], s[0:1], 104")
    E.e(f"v_and_b32 v{vLane}, 63, v0")
    E.e(f"v_lshrrev_b32 v{vT}, 6, v0")
    E.e(f"v_lshlrev_b32 v{vL16}, 4, v{vLane}")
    E.e(f"v_readfirstlane_b32 s{sW}, v{vT}")
    E.e(f"s_and_b32 s{sT}, s2, 7")
    E.e(f"s_lshr_b32 s{sT2}, s2, 3")
    E.e(f"s_and_b32 s{sRT}, s{sT2}, 7")
    E.e(f"s_lshr_b32 s{sT2}, s{sT2}, 3")
    E.e(f"s_lshl_b32 s{sH}, s{sT}, 2")
    E.e(f"s_add_u32 s{sH}, s{sH}, s{sT2}")
    E.e(f"v_lshrrev_b32 v{vT}, 3, v{vLane}")
    E.e(f"v_lshlrev_b32 v{vT}, 10, v{vT}")
    E.e(f"v_and_b32 v{vT+1}, 7, v{vLane}")
    E.e(f"v_lshrrev_b32 v{vT+2}, 4, v{vLane}")
    E.e(f"v_xor_b32 v{vT+1}, v{vT+1}, v{vT+2}")
    E.e(f"v_lshl_add_u32 v{vCK}, v{vT+1}, 4, v{vT}")
    E.e(f"v_xor_b32 v{vT+3}, 64, v{vCK}")
    E.e(f"v_add_u32 v{vCK+1}, {7*1024}, v{vT+3}")
    E.e(f"v_add_u32 v{vCK+2}, {14*1024}, v{vCK}")
    E.e(f"v_add_u32 v{vCK+3}, {21*1024}, v{vT+3}")
    E.e(f"v_bfe_u32 v{vT}, v{vLane}, 1, 3")
    E.e(f"v_xor_b32 v{vT}, v{vT}, v{vT+2}")
    E.e(f"v_lshlrev_b32 v{vT}, 5, v{vT}")
    E.e(f"v_and_b32 v{vT+1}, 1, v{vLane}")
    E.e(f"v_lshl_add_u32 v{vT}, v{vT+1}, 4, v{vT}")
    E.e(f"v_lshl_add_u32 v{vWD}, v{vT+2}, 13, v{vT}")
    E.e(f"v_add_u32 v{vWD+1}, {32768-1024}, v{vWD}")
    E.e(f"v_xor_b32 v{vT+3}, 128, v{vWD}")
    E.e(f"v_add_u32 v{vWD+2}, {2*(32768-1024)}, v{vT+3}")
    E.e(f"v_add_u32 v{vWD+3}, {3*(32768-1024)}, v{vT+3}")
    E.e(f"v_bfe_u32 v{vT}, v{vLane}, 2, 2")
    E.e(f"v_lshl_add_u32 v{vT+1}, v{vT+2}, 3, v{vT}")
    E.e(f"v_lshlrev_b32 v{vT+1}, 8, v{vT+1}")
    E.e(f"v_and_b32 v{vT+3}, 3, v{vLane}")
    E.e(f"v_lshl_add_u32 v{vT+1}, v{vT+3}, 3, v{vT+1}")
    E.e(f"v_and_b32 v{vT+3}, 1, v{vT+2}")
    E.e(f"v_lshl_add_u32 v{vT}, v{vT+3}, 2, v{vT}")
    E.e(f"v_lshl_add_u32 v{vW}, v{vT}, 5, v{vT+1}")
    for c in range(1, 8):
        E.e(f"v_xor_b32 v{vW+c}, {c*32}, v{vW}")
    E.e(f"v_and_b32 v{vT}, 15, v{vLane}")
    E.e(f"v_lshrrev_b32 v{vT+1}, 1, v{vT}")
    E.e(f"v_xor_b32 v{vT+1}, v{vT+1}, v{vT+2}")
    E.e(f"v_lshlrev_b32 v{vT+1}, 4, v{vT+1}")
    E.e(f"v_lshl_add_u32 v{vA0}, v{vT}, 7, v{vT+1}")
    E.e(f"s_mul_i32 s{sCKl}, s{sW}, 24576")
    E.e(f"s_add_u32 s{sCKl}, s{sCKl}, {L_CK}")
    E.e(f"v_add_u32 v{vA0}, s{sCKl}, v{vA0}")
    E.e(f"v_xor_b32 v{vA1}, 64, v{vA0}")
    E.e(f"s_lshl_b32 s{sWl}, s{sW}, 12")
    E.e(f"s_and_b32 s{sUl}, s{sW}, 1")
    E.e(f"s_lshl_b32 s{sUl}, s{sUl}, 12")
    E.e(f"s_lshl_b32 s{sCK0}, s{sRT}, 18")
    E.e(f"s_lshl_b32 s{sT}, s{sW}, 16")
    E.e(f"s_add_u32 s{sCK0}, s{sCK0}, s{sT}")
    E.e(f"s_lshl_b32 s{sWo}, s{sW}, 17")
    E.e(f"s_lshl_b32 s{sT}, s{sH}, 8")
    E.e(f"s_add_u32 s{sWo}, s{sWo}, s{sT}")
    E.e(f"s_lshl_b32 s{sKst}, s{sH}, 19")
    E.e(f"s_lshl_b32 s{sT}, s{sRT}, 16")
    E.e(f"s_add_u32 s{sKst}, s{sKst}, s{sT}")
    E.e(f"s_lshl_b32 s{sT}, s{sW}, 14")
    E.e(f"s_add_u32 s{sKst}, s{sKst}, s{sT}")
    E.e(f"s_add_u32 s{sVst}, s{sKst}, {hex(WS_V)}")
    E.e(f"s_add_u32 s{sKst}, s{sKst}, {hex(WS_K)}")
    E.e(f"s_mov_b32 s{sSc}, {hex(SCALE_BITS)}")
    E.e("s_waitcnt lgkmcnt(0)")
    srd(E, SX, 4, 0x200000); srd(E, SCK, 6, 0x200000); srd(E, SWK, 10, 0x400000); srd(E, SWV, 12, 0x400000)
    srd(E, SWO, 14, 0x400000); srd(E, SWR, 16, 1024); srd(E, SWS, 18, WS_SIZE)

    def dma_ck(j):
        ops = []
        slot = j % 3
        for grp in range(2):
            def setup(E, grp=grp):
                E.e(f"s_add_u32 m0, s{sCKl}, {slot*8192 + grp*4096}")
                E.e(f"s_add_u32 s{sT}, s{sCK0}, {grp*32768 + j*128}")
            for i in range(4):
                def op(E, i=i, first=(i == 0), setup=setup):
                    if first: setup(E)
                    E.vmem(f"buffer_load_dwordx4 v{vCK+i}, {s4(SCK)}, s{sT} offen offset:{i*1024} lds", f"c{j}")
                ops.append(op)
        return ops
    def dma_w(j):
        ops = []
        for i in range(4):
            def op(E, i=i):
                if i == 0:
                    E.e(f"s_add_u32 m0, s{sWl}, {L_W(j % 3)}")
                    E.e(f"s_add_u32 s{sT2}, s{sWo}, {j*64*8192}")
                E.vmem(f"buffer_load_dwordx4 v{vWD+i}, {s4(SWK)}, s{sT2} offen offset:{i*1024} lds", f"c{j}")
            ops.append(op)
        return ops
    ULOC = {0: L_SP, 1: L_SP + 8192, 2: L_W(2), 3: L_W(2) + 8192, 8: L_W(0), 9: L_W(0) + 8192, 14: L_W(1), 15: L_W(1) + 8192}
    for w in range(4):
        ULOC[4 + w] = L_CK + w * 24576 + 16384
        ULOC[10 + w] = L_CK + w * 24576
    def dma_u(pair):
        ops = []
        for i in range(4):
            def op(E, i=i):
                if i == 0:
                    E.e(f"s_cmp_lt_u32 s{sW}, 2")
                    E.e(f"s_cselect_b32 s{sT2}, {ULOC[2*pair]}, {ULOC[2*pair+1]}") if False else None
                    E.e(f"s_mov_b32 s{sT2}, {ULOC[2*pair+1]}")
                    E.e(f"s_cselect_b32 s{sT2}, {ULOC[2*pair]}, s{sT2}")
                    E.e(f"s_add_u32 m0, s{sT2}, s{sUl}")
                    E.e(f"s_add_u32 s{sT2}, s{sWo}, {pair*64*8192}")
                E.vmem(f"buffer_load_dwordx4 v{vWD+i}, {s4(SWV)}, s{sT2} offen offset:{i*1024} lds", f"u{pair}")
            ops.append(op)
        return ops

    X0, X1, WR = 128, 132, 136
    E.e(f"s_lshl_b32 s{sT}, s2, 13")
    E.e(f"s_lshl_b32 s{sT2}, s{sW}, 11")
    E.e(f"s_add_u32 s{sT}, s{sT}, s{sT2}")
    E.vmem(f"buffer_load_dwordx4 {v4(X0)}, v{vL16}, {s4(SX)}, s{sT} offen", "ln")
    E.vmem(f"buffer_load_dwordx4 {v4(X1)}, v{vL16}, {s4(SX)}, s{sT} offen offset:1024", "ln")
    E.vmem(f"buffer_load_dwordx4 {v4(WR)}, v{vL16}, {s4(SWR)}, 0 offen", "ln")
    for op in dma_w(0) + dma_ck(0) + dma_w(1) + dma_ck(1): op(E)
    E.e(f"v_lshrrev_b32 v{vT}, 3, v{vLane}")
    E.e(f"v_lshlrev_b32 v{vT}, 10, v{vT}")
    E.e(f"v_and_b32 v{vT+1}, 7, v{vLane}")
    E.e(f"v_lshl_add_u32 v{vT+4}, v{vT+1}, 4, v{vT}")
    E.e(f"s_lshr_b32 s{sT}, s2, 1")
    E.e(f"s_lshl_b32 s{sT}, s{sT}, 15")
    E.e(f"s_and_b32 s{sM}, s2, 1")
    E.e(f"s_lshl_b32 s{sM}, s{sM}, 2")
    E.e(f"s_add_u32 s{sM}, s{sM}, s{sW}")
    E.e(f"s_lshl_b32 s{sT2}, s{sM}, 7")
    E.e(f"s_add_u32 s{sT}, s{sT}, s{sT2}")
    for i in range(4):
        E.e(f"s_add_u32 m0, s{sWl}, {L_SP + i*1024}")
        E.e(f"s_add_u32 s{sT2}, s{sT}, {i*8192}")
        E.vmem(f"buffer_load_dwordx4 v{vT+4}, {s4(SWO)}, s{sT2} offen lds", "wo")
    for op in dma_w(2) + dma_ck(2): op(E)

    E.wait_vm("ln")
    F = [140, 148]
    Sm = [156, 157]; Tm = [158, 159]; D = [160, 168]
    WRF = 176
    for rr, X in enumerate((X0, X1)):
        for k in range(4):
            E.e(f"v_lshlrev_b32 v{F[rr]+2*k}, 16, v{X+k}")
            E.e(f"v_and_b32 v{F[rr]+2*k+1}, 0xffff0000, v{X+k}")
    for k in range(4):
        E.e(f"v_lshlrev_b32 v{WRF+2*k}, 16, v{WR+k}")
        E.e(f"v_and_b32 v{WRF+2*k+1}, 0xffff0000, v{WR+k}")
    for rr in range(2):
        E.e(f"v_add_f32 v{Sm[rr]}, v{F[rr]}, v{F[rr]+1}")
    for k in range(2, 8):
        for rr in range(2):
            E.e(f"v_add_f32 v{Sm[rr]}, v{Sm[rr]}, v{F[rr]+k}")
    wave_sum2(E, Sm, Tm)
    MEAN = [184, 185]; MB = [186, 187]
    for rr in range(2):
        E.e(f"v_mul_f32 v{MEAN[rr]}, 0x3b000000, v{Sm[rr]}")
    for k in range(8):
        for rr in range(2):
            E.e(f"v_sub_f32 v{D[rr]+k}, v{F[rr]+k}, v{MEAN[rr]}")
    for rr in range(2):
        E.e(f"v_mul_f32 v{Sm[rr]}, v{D[rr]}, v{D[rr]}")
    for k in range(1, 8):
        for rr in range(2):
            E.e(f"v_fmac_f32 v{Sm[rr]}, v{D[rr]+k}, v{D[rr]+k}")
    wave_sum2(E, Sm, Tm)
    for rr in range(2):
        E.e(f"v_mul_f32 v{Sm[rr]}, 0x3b000000, v{Sm[rr]}")
    for rr in range(2):
        E.e(f"v_cvt_pk_bf16_f32 v{Tm[rr]}, v{Sm[rr]}, v{MEAN[rr]}")
    for rr in range(2):
        E.e(f"v_and_b32 v{MB[rr]}, 0xffff0000, v{Tm[rr]}")
        E.e(f"v_lshlrev_b32 v{Sm[rr]}, 16, v{Tm[rr]}")
    for rr in range(2):
        E.e(f"v_add_f32 v{Sm[rr]}, 0x3727c5ac, v{Sm[rr]}")
    for rr in range(2):
        E.e(f"v_cvt_pk_bf16_f32 v{Sm[rr]}, v{Sm[rr]}, v{Sm[rr]}")
    for rr in range(2):
        E.e(f"v_lshlrev_b32 v{Sm[rr]}, 16, v{Sm[rr]}")
    for rr in range(2):
        E.e(f"v_sqrt_f32 v{Sm[rr]}, v{Sm[rr]}")
    E.e("s_nop 0")
    for rr in range(2):
        E.e(f"v_cvt_pk_bf16_f32 v{Sm[rr]}, v{Sm[rr]}, v{Sm[rr]}")
    for rr in range(2):
        E.e(f"v_lshlrev_b32 v{Sm[rr]}, 16, v{Sm[rr]}")
    for rr in range(2):
        E.e(f"v_rcp_f32 v{Tm[rr]}, v{Sm[rr]}")
    for k in range(8):
        for rr in range(2):
            E.e(f"v_sub_f32 v{D[rr]+k}, v{F[rr]+k}, v{MB[rr]}")
    for k in range(4):
        for rr in range(2):
            E.e(f"v_cvt_pk_bf16_f32 v{F[rr]+k}, v{D[rr]+2*k}, v{D[rr]+2*k+1}")
    for k in range(4):
        for rr in range(2):
            E.e(f"v_lshlrev_b32 v{D[rr]+2*k}, 16, v{F[rr]+k}")
            E.e(f"v_and_b32 v{D[rr]+2*k+1}, 0xffff0000, v{F[rr]+k}")
    for k in range(8):
        for rr in range(2):
            E.e(f"v_mul_f32 v{F[rr]+k}, v{D[rr]+k}, v{Tm[rr]}")
    for k in range(8):
        for rr in range(2):
            E.e(f"v_fma_f32 v{D[rr]+k}, -v{F[rr]+k}, v{Sm[rr]}, v{D[rr]+k}")
    for k in range(8):
        for rr in range(2):
            E.e(f"v_fmac_f32 v{F[rr]+k}, v{D[rr]+k}, v{Tm[rr]}")
    for k in range(4):
        for rr, X in enumerate((X0, X1)):
            E.e(f"v_cvt_pk_bf16_f32 v{X+k}, v{F[rr]+2*k}, v{F[rr]+2*k+1}")
    E.e(f"v_lshrrev_b32 v{vT}, 2, v{vLane}")
    E.e(f"v_lshlrev_b32 v{vT}, 12, v{vT}")
    E.e(f"v_and_b32 v{vT+1}, 3, v{vLane}")
    E.e(f"v_lshl_add_u32 v{vT}, v{vT+1}, 8, v{vT}")
    E.e(f"s_lshr_b32 s{sT}, s2, 3")
    E.e(f"s_lshl_b32 s{sT}, s{sT}, 16")
    E.e(f"s_bfe_u32 s{sT2}, s2, 0x20001")
    E.e(f"s_lshl_b32 s{sT2}, s{sT2}, 10")
    E.e(f"s_add_u32 s{sT}, s{sT}, s{sT2}")
    E.e(f"s_and_b32 s{sT2}, s2, 1")
    E.e(f"s_lshl_b32 s{sT2}, s{sT2}, 7")
    E.e(f"s_add_u32 s{sT}, s{sT}, s{sT2}")
    E.e(f"s_lshl_b32 s{sT2}, s{sW}, 5")
    E.e(f"s_add_u32 s{sT}, s{sT}, s{sT2}")
    E.vmem(f"buffer_store_dwordx4 {v4(X0)}, v{vT}, {s4(SWS)}, s{sT} offen", "st")
    E.vmem(f"buffer_store_dwordx4 {v4(X1)}, v{vT}, {s4(SWS)}, s{sT} offen offset:16", "st")
    for k in range(4):
        for rr, X in enumerate((X0, X1)):
            E.e(f"v_lshlrev_b32 v{D[rr]+2*k}, 16, v{X+k}")
            E.e(f"v_and_b32 v{D[rr]+2*k+1}, 0xffff0000, v{X+k}")
    for rr in range(2):
        E.e(f"v_mul_f32 v{Sm[rr]}, v{D[rr]}, v{WRF}")
    for k in range(1, 8):
        for rr in range(2):
            E.e(f"v_fmac_f32 v{Sm[rr]}, v{D[rr]+k}, v{WRF+k}")
    wave_sum2(E, Sm, Tm)
    E.e(f"v_cvt_pk_bf16_f32 v{Tm[0]}, v{Sm[0]}, v{Sm[1]}")
    E.e(f"v_lshlrev_b32 v{MEAN[0]}, 16, v{Tm[0]}")
    E.e(f"v_and_b32 v{MEAN[1]}, 0xffff0000, v{Tm[0]}")
    E.e(f"s_lshl_b32 s{sT}, s2, 3")
    E.e(f"s_lshl_b32 s{sT2}, s{sW}, 1")
    E.e(f"s_add_u32 s{sT}, s{sT}, s{sT2}")
    E.e(f"s_sub_u32 s{sT}, 2047, s{sT}")
    E.e(f"s_sub_u32 s{sT2}, s{sT}, 1")
    for rr in range(2):
        E.e(f"v_add_f32 v{MEAN[rr]}, 0, v{MEAN[rr]}")
    for rr in range(2):
        E.e(f"v_ashrrev_i32 v{Sm[rr]}, 31, v{MEAN[rr]}")
    for rr in range(2):
        E.e(f"v_or_b32 v{Sm[rr]}, 0x80000000, v{Sm[rr]}")
    for rr in range(2):
        E.e(f"v_xor_b32 v{MEAN[rr]}, v{MEAN[rr]}, v{Sm[rr]}")
    for rr in range(2):
        E.e(f"v_and_b32 v{MEAN[rr]}, 0xffff0000, v{MEAN[rr]}")
    E.e(f"v_or_b32 v{MEAN[0]}, s{sT}, v{MEAN[0]}")
    E.e(f"v_or_b32 v{MEAN[1]}, s{sT2}, v{MEAN[1]}")
    E.e(f"s_lshl_b32 s{sT}, s2, 5")
    E.e(f"s_lshl_b32 s{sT2}, s{sW}, 3")
    E.e(f"s_add_u32 s{sT}, s{sT}, s{sT2}")
    E.e(f"s_add_u32 s{sT}, s{sT}, {hex(WS_RS)}")
    E.e(f"v_mov_b32 v{vT+1}, 0")
    E.e(f"s_mov_b64 exec, 1")
    E.vmem(f"buffer_store_dwordx2 {v2(MEAN[0])}, v{vT+1}, {s4(SWS)}, s{sT} offen", "st")
    E.e(f"s_mov_b64 exec, -1")

    E.wait_vm("c0")
    E.e("s_barrier")
    W = Weave()
    S = Stream(W, lead=20, age=10, maxper=1)
    fi = [0]
    def wfrag_read(base_reg, off, first_use, earliest, nuse=4, latest=10**9):
        r = WF + (fi[0] % NWF) * 4
        tag = f"wf{fi[0]}"
        ea = max(earliest, ring_last.get(fi[0] % NWF, -10**9))
        S.read(tag, [f"ds_read_b64_tr_b16 {v2(r)}, v{base_reg} offset:{off}", f"ds_read_b64_tr_b16 {v2(r+2)}, v{base_reg} offset:{off+1024}"], first_use, ea, latest=latest)
        ring_last[fi[0] % NWF] = first_use + nuse - 1
        fi[0] += 1
        return r
    ring_last = {}
    BARPOS = 48
    bar_slot = {}
    bar_slot[0] = -10**9
    for j in range(1, 8): bar_slot[j] = (j - 1) * 64 + BARPOS
    for j in range(8):
        for ks in range(2):
            kb = 2 * j + ks
            base = len(W.bb)
            for a in range(4):
                S.read(f"cf{kb}_{a}", [f"ds_read_b128 {a4(CF(a,kb))}, v{vA1 if ks else vA0} offset:{(j%3)*8192 + a*2048}"], base + a, bar_slot[j], lead=24, latest=j*64+BARPOS)
            for c in range(8):
                r = wfrag_read(vW + c, L_W(j % 3) + ks * 8192, base + 4 * c, bar_slot[j], latest=j*64+BARPOS)
                for a in range(4):
                    cin = "0" if kb == 0 else v4(KT(c, a))
                    W.mf(f"{MFMA} {v4(KT(c,a))}, {v4(r)}, {a4(CF(a,kb))}, {cin}")
    P1END = len(W.bb)
    VT = lambda a, c: ACC2 + (c * 4 + a) * 4
    def uaddr(u, cc):
        loc = ULOC[u]; win = loc // 65536
        return vW + win * 4 + cc, loc - win * 65536
    ubar = {}
    for u in range(16):
        ubar[u] = (7 * 64 + BARPOS) if u < 8 else (P1END + 5 * 16 if u < 14 else P1END + 11 * 16)
    ADDR2A = 7 * 64 + BARPOS
    for u in range(16):
        base = len(W.bb)
        for c in range(4):
            reg, off = uaddr(u, c)
            r = wfrag_read(reg, off, base + 4 * c, ubar[u], latest=P1END+256-22)
            for a in range(4):
                cin = "0" if u == 0 else v4(VT(a, c))
                W.mf(f"{MFMA} {v4(VT(a,c))}, {a4(CF(a,u))}, {v4(r)}, {cin}")
    P2AEND = len(W.bb)
    ADDR2B = P2AEND - 22
    VB = lambda a, c: ACC1 + ((c & 1) * 4 + a) * 4
    for c in range(4):
        for u in range(16):
            base = len(W.bb)
            reg, off = uaddr(u, c)
            r = wfrag_read(reg, off, base, ADDR2B + 1)
            for a in range(4):
                cin = "0" if u == 0 else v4(VB(a, c))
                W.mf(f"{MFMA} {v4(VB(a,c))}, {a4(CF(a,u))}, {v4(r)}, {cin}")
    NTOT = len(W.bb)

    def spread(ops, s0, s1):
        n = len(ops)
        for k, op in enumerate(ops):
            W.add(s0 + (k * (s1 - s0)) // n, op)
    def barrier_at(slot, vmtags):
        def f(E):
            E.wait_vm(*vmtags)
            E.e("s_waitcnt lgkmcnt(0)"); E.lg = []
            E.e("s_barrier")
        W.post[slot].insert(0, f)
    for j in range(8):
        bs = j * 64 + BARPOS
        if j < 7: barrier_at(bs, [f"c{j+1}"])
        else: barrier_at(bs, ["u0", "u1", "u2", "u3"])
        if j + 3 < 8:
            ops = dma_w(j + 3) + dma_ck(j + 3)
            if j == 2: ops = ops + dma_u(0)
        elif j == 5: ops = dma_u(1) + dma_u(2) + dma_u(3)
        elif j == 6: ops = dma_u(4) + dma_u(5) + dma_u(6)
        else: ops = dma_u(7)
        spread(ops, bs + 1, bs + 1 + 56)
    barrier_at(P1END + 5 * 16, ["u4", "u5", "u6"])
    barrier_at(P1END + 11 * 16, ["u7"])
    WOT = 176
    def wo_addr(E):
        E.e(f"v_lshrrev_b32 v{vT}, 2, v{vLane}")
        E.e(f"v_lshlrev_b32 v{vT}, 7, v{vT}")
        E.e(f"v_and_b32 v{vT+1}, 3, v{vLane}")
        E.e(f"v_lshl_add_u32 v{vT}, v{vT+1}, 3, v{vT}")
        E.e(f"v_add_u32 v{vT}, s{sWl}, v{vT}")
    W.add(2 * 64 - 10, wo_addr)
    for mm in range(4):
        W.add(2 * 64 + 2 * mm, (lambda mm: lambda E: E.lds(f"ds_read_b64_tr_b16 {v2(WOT+4*mm)}, v{vT} offset:{L_SP + mm*32}", "wot"))(mm))
        W.add(2 * 64 + 2 * mm + 1, (lambda mm: lambda E: E.lds(f"ds_read_b64_tr_b16 {v2(WOT+4*mm+2)}, v{vT} offset:{L_SP + mm*32 + 2048}", "wot"))(mm))
    def wo_st(E):
        E.wait_lg("wot")
        E.e(f"s_lshl_b32 s{sWv}, s{sM}, 19")
        E.e(f"s_lshr_b32 s{sWv+1}, s2, 1")
        E.e(f"s_lshl_b32 s{sWv+1}, s{sWv+1}, 12")
        E.e(f"s_add_u32 s{sWv}, s{sWv}, s{sWv+1}")
        E.e(f"s_add_u32 s{sWv}, s{sWv}, {hex(WS_WOF)}")
    W.add(2 * 64 + 24, wo_st)
    for mm in range(4):
        W.add(2 * 64 + 26 + 4 * mm, (lambda mm: lambda E: E.vmem(f"buffer_store_dwordx4 {v4(WOT+4*mm)}, v{vL16}, {s4(SWS)}, s{sWv} offen offset:{mm*1024}{stflag}", "st"))(mm))
    def addr2a(E):
        for cc in range(4):
            E.e(f"v_add_u32 v{vW+4+cc}, 0x10000, v{vW+cc}")
            E.e(f"v_add_u32 v{vW+8+cc}, 0x20000, v{vW+cc}")
    W.post[ADDR2A].insert(1, addr2a)
    def addr2b(E):
        for k in range(12):
            E.e(f"v_xor_b32 v{vW+k}, 128, v{vW+k}")
    W.add(ADDR2B, addr2b)
    def pack_store(src0, src1, sbase, idx, slot, scale=False):
        if scale:
            for q in range(4):
                W.add(slot + q, f"v_mul_f32 v{src0+q}, s{sSc}, v{src0+q}")
                W.add(slot + q, f"v_mul_f32 v{src1+q}, s{sSc}, v{src1+q}")
            slot += 4
        W.add(slot, f"v_cvt_pk_bf16_f32 v{src0}, v{src0}, v{src0+1}")
        W.add(slot, f"v_cvt_pk_bf16_f32 v{src0+1}, v{src0+2}, v{src0+3}")
        W.add(slot + 1, f"v_cvt_pk_bf16_f32 v{src0+2}, v{src1}, v{src1+1}")
        W.add(slot + 1, f"v_cvt_pk_bf16_f32 v{src0+3}, v{src1+2}, v{src1+3}")
        W.add(slot + 2, f"s_add_u32 s{sWv}, s{sbase}, {(idx>>2)*4096}")
        W.add(slot + 2, (lambda E: E.vmem(f"buffer_store_dwordx4 {v4(src0)}, v{vL16}, {s4(SWS)}, s{sWv} offen offset:{(idx&3)*1024}{stflag}", "st")))
    k = 0
    for t in range(4):
        for a in range(4):
            pack_store(KT(2 * t, a), KT(2 * t + 1, a), sKst, a * 4 + t, P1END + 10 + k * 14, scale=True)
            k += 1
    k = 0
    for c in range(4):
        for n in range(2):
            pack_store(VT(2 * n, c), VT(2 * n + 1, c), sVst, n * 8 + c, P2AEND + 10 + k * 7)
            k += 1
    for c in range(3):
        for n in range(2):
            pack_store(VB(2 * n, c), VB(2 * n + 1, c), sVst, n * 8 + 4 + c, P2AEND + (c + 1) * 64 + 10 + n * 12)
    S.place(E)
    W.emit(E)
    E.e("s_nop 7")
    for n in range(2):
        s0, s1 = VB(2 * n, 3), VB(2 * n + 1, 3)
        E.e(f"v_cvt_pk_bf16_f32 v{s0}, v{s0}, v{s0+1}")
        E.e(f"v_cvt_pk_bf16_f32 v{s0+1}, v{s0+2}, v{s0+3}")
        E.e(f"v_cvt_pk_bf16_f32 v{s0+2}, v{s1}, v{s1+1}")
        E.e(f"v_cvt_pk_bf16_f32 v{s0+3}, v{s1+2}, v{s1+3}")
        idx = n * 8 + 7
        E.e(f"s_add_u32 s{sWv}, s{sVst}, {(idx>>2)*4096}")
        E.vmem(f"buffer_store_dwordx4 {v4(s0)}, v{vL16}, {s4(SWS)}, s{sWv} offen offset:{(idx&3)*1024}{stflag}", "st")
    E.e(f"{name}_end:")
    E.e("s_endpgm")
    probs = check(E.L, name)
    for p in probs: print("HAZARD", p)
    return head(name) + E.text(), kd(name, 512, 256, 96)

if __name__ == "__main__":
    t, k = gen_k1()
    print(len(t.splitlines()))
```

```python
from common import *

BIGNEG = "0xf149f2ca"

def gen_k2(name="k2_kernel", stflag=""):
    E = Em()
    N = name
    SWQ, SWS, SKV = 20, 24, 28
    sW, sH, sP, sT, sT2 = 32, 33, 34, 35, 36
    sTgO = 37
    sSrc0, sSrc1, sRP = 38, 39, 40
    sCnt, sEv = 41, 42
    eSw, eP1, eP2, ePl, eDr = 43, 44, 45, 46, 47
    sDual, sSeg = 48, 49
    sXN, sWo, sWl = 50, 51, 52
    sTgA = 53
    sT3 = 54
    Sb = lambda par, a, b: ((par * 4 + b) * 2 + a) * 4
    Pb = lambda par, b: 64 + (par * 4 + b) * 4
    IN = lambda a, b: 96 + (a * 4 + b) * 4
    LS = lambda b: 128 + b * 4
    ONES = 144; NEGM = 148; DM = 152; NEGA = 156
    vRd, vL16, vLane, vMask, vG = 160, 161, 162, 163, 164
    vW = 166
    vWD = 174
    vT = 178
    QV = lambda b, t: 192 + (b * 4 + t) * 4
    WF = 128
    O = lambda c, b: (c * 4 + b) * 4
    QA = lambda b, t: 128 + (b * 4 + t) * 4
    KF = lambda i: 192 + 4 * i
    VF = lambda c: 224 + 4 * c
    XF = lambda kb, b: (kb * 4 + b) * 4
    QT = lambda c, b: (c * 4 + b) * 4
    L_WQ = 32768
    L_QX = 131072
    L_NM = 65536 + 49152

    E.e("s_cmp_ge_u32 s2, 256")
    E.e(f"s_cbranch_scc1 {N}_end")
    E.e("s_load_dwordx2 s[4:5], s[0:1], 16")
    E.e("s_load_dwordx2 s[6:7], s[0:1], 104")
    E.e(f"v_and_b32 v{vLane}, 63, v0")
    E.e(f"v_lshrrev_b32 v{vT}, 6, v0")
    E.e(f"v_lshlrev_b32 v{vL16}, 4, v{vLane}")
    E.e(f"v_readfirstlane_b32 s{sW}, v{vT}")
    E.e(f"s_and_b32 s{sT}, s2, 7")
    E.e(f"s_lshr_b32 s{sT2}, s2, 3")
    E.e(f"s_and_b32 s{sP}, s{sT2}, 7")
    E.e(f"s_lshr_b32 s{sT2}, s{sT2}, 3")
    E.e(f"s_lshl_b32 s{sH}, s{sT}, 2")
    E.e(f"s_add_u32 s{sH}, s{sH}, s{sT2}")
    E.e(f"v_lshrrev_b32 v{vT+2}, 4, v{vLane}")
    E.e(f"v_bfe_u32 v{vT}, v{vLane}, 1, 3")
    E.e(f"v_xor_b32 v{vT}, v{vT}, v{vT+2}")
    E.e(f"v_lshlrev_b32 v{vT}, 5, v{vT}")
    E.e(f"v_and_b32 v{vT+1}, 1, v{vLane}")
    E.e(f"v_lshl_add_u32 v{vT}, v{vT+1}, 4, v{vT}")
    E.e(f"v_lshl_add_u32 v{vWD}, v{vT+2}, 13, v{vT}")
    E.e(f"v_add_u32 v{vWD+1}, {32768-1024}, v{vWD}")
    E.e(f"v_xor_b32 v{vT+3}, 128, v{vWD}")
    E.e(f"v_add_u32 v{vWD+2}, {2*(32768-1024)}, v{vT+3}")
    E.e(f"v_add_u32 v{vWD+3}, {3*(32768-1024)}, v{vT+3}")
    E.e(f"v_bfe_u32 v{vT}, v{vLane}, 2, 2")
    E.e(f"v_lshl_add_u32 v{vT+1}, v{vT+2}, 3, v{vT}")
    E.e(f"v_lshlrev_b32 v{vT+1}, 8, v{vT+1}")
    E.e(f"v_and_b32 v{vT+3}, 3, v{vLane}")
    E.e(f"v_lshl_add_u32 v{vT+1}, v{vT+3}, 3, v{vT+1}")
    E.e(f"v_and_b32 v{vT+3}, 1, v{vT+2}")
    E.e(f"v_lshl_add_u32 v{vT}, v{vT+3}, 2, v{vT}")
    E.e(f"v_lshl_add_u32 v{vW}, v{vT}, 5, v{vT+1}")
    E.e(f"v_add_u32 v{vW}, {L_WQ}, v{vW}")
    for c in range(1, 8):
        E.e(f"v_xor_b32 v{vW+c}, {c*32}, v{vW}")
    E.e(f"s_lshl_b32 s{sT}, s{sP}, 1")
    E.e(f"s_sub_u32 s{sT2}, 30, s{sT}")
    E.e(f"s_add_u32 s{sT3}, s{sT2}, s{sW}")
    E.e(f"s_add_u32 s{sT}, s{sT}, s{sW}")
    E.e(f"s_sub_u32 s{sT}, s{sT}, 2")
    E.e(f"s_cmp_lt_u32 s{sW}, 2")
    E.e(f"s_cselect_b32 s{sT}, s{sT3}, s{sT}")
    E.e(f"s_lshl_b32 s{sXN}, s{sT}, 16")
    E.e(f"s_lshl_b32 s{sTgO}, s{sT}, 19")
    E.e(f"s_sub_u32 s{sT}, 3, s{sW}")
    E.e(f"s_min_u32 s{sT}, s{sT}, s{sW}")
    E.e(f"s_add_u32 s{sT}, s{sT}, s{sT2}")
    E.e(f"s_lshl_b32 s{sTgA}, s{sT}, 19")
    E.e(f"s_lshl_b32 s{sT}, s{sH}, 14")
    E.e(f"s_add_u32 s{sT}, s{sT}, {hex(WS_CTX)}")
    E.e(f"s_add_u32 s{sTgO}, s{sTgO}, s{sT}")
    E.e(f"s_add_u32 s{sTgA}, s{sTgA}, s{sT}")
    E.e(f"s_lshl_b32 s{sWl}, s{sW}, 12")
    E.e(f"s_lshl_b32 s{sWo}, s{sW}, 17")
    E.e(f"s_lshl_b32 s{sT}, s{sH}, 8")
    E.e(f"s_add_u32 s{sWo}, s{sWo}, s{sT}")
    E.e(f"s_cmp_lt_u32 s{sW}, 2")
    E.e(f"s_mov_b32 s{sT}, {hex(WS_V - 8192)}")
    E.e(f"s_cselect_b32 s{sSrc0}, {hex(WS_K)}, s{sT}")
    E.e(f"s_mov_b32 s{sT}, {hex(WS_V + 8192)}")
    E.e(f"s_cselect_b32 s{sSrc1}, {hex(WS_K)}, s{sT}")
    E.e(f"s_lshl_b32 s{sT}, s{sH}, 19")
    E.e(f"s_and_b32 s{sT2}, s{sW}, 1")
    E.e(f"s_lshl_b32 s{sT2}, s{sT2}, 12")
    E.e(f"s_add_u32 s{sT}, s{sT}, s{sT2}")
    E.e(f"s_add_u32 s{sSrc0}, s{sSrc0}, s{sT}")
    E.e(f"s_add_u32 s{sSrc1}, s{sSrc1}, s{sT}")
    E.e(f"s_lshl_b32 s{sT}, s{sP}, 2")
    E.e(f"s_sub_u32 s{sT2}, 63, s{sT}")
    E.e(f"s_lshl_b32 s{sT2}, s{sT2}, 13")
    E.e(f"s_add_u32 s{sSrc1}, s{sSrc1}, s{sT2}")
    E.e(f"s_mov_b32 s{eSw}, s{sT}")
    E.e(f"s_lshl_b32 s{sT2}, s{sW}, 1")
    E.e(f"s_add_u32 s{sT2}, s{sT2}, s{sT}")
    E.e(f"s_sub_u32 s{sT2}, s{sT2}, 4")
    E.e(f"s_cmp_lt_u32 s{sW}, 2")
    E.e(f"s_cselect_b32 s{eDr}, 32, s{sT2}")
    E.e(f"s_mov_b32 s{eP1}, s{eDr}")
    E.e(f"s_add_u32 s{eP2}, s{eDr}, 1")
    E.e(f"s_add_u32 s{eDr}, s{eDr}, 2")
    E.e(f"s_mov_b32 s{ePl}, 100")
    E.e(f"s_cmp_eq_u32 s{sP}, 7")
    E.e(f"s_cselect_b32 s{sT}, 1, 0")
    E.e(f"s_cmp_ge_u32 s{sW}, s{sT}")
    E.e(f"s_cselect_b32 s{sT2}, 1, 0")
    E.e(f"s_cmp_lt_u32 s{sW}, 2")
    E.e(f"s_cselect_b32 s{sT2}, s{sT2}, 0")
    E.e(f"s_cmp_eq_u32 s{sT2}, 1")
    E.e(f"s_cselect_b32 s{eP1}, 100, s{eP1}")
    E.e(f"s_cselect_b32 s{eP2}, 100, s{eP2}")
    E.e(f"s_mov_b32 s{sDual}, 0")
    E.e(f"s_mov_b32 s{sSeg}, 0")
    E.e(f"s_mov_b32 s{sRP}, s{sWl}")
    E.e(f"v_mov_b32 v{vMask}, 0xc000")
    E.e(f"v_mov_b32 v{vRd}, v{vL16}")
    E.e("s_waitcnt lgkmcnt(0)")
    srd(E, SWQ, 4, 0x400000); srd(E, SWS, 6, WS_SIZE); srd(E, SKV, 6, WS_SIZE)

    def dma_w(j):
        ops = []
        for i in range(4):
            def op(E, i=i):
                if i == 0:
                    E.e(f"s_add_u32 m0, s{sWl}, {L_WQ + j*16384}")
                    E.e(f"s_add_u32 s{sT2}, s{sWo}, {j*64*8192}")
                E.vmem(f"buffer_load_dwordx4 v{vWD+i}, {s4(SWQ)}, s{sT2} offen offset:{i*1024} lds", f"c{j}")
            ops.append(op)
        return ops
    def ld_xn(j):
        ops = []
        for ks in range(2):
            kb = 2 * j + ks
            for b in range(4):
                def op(E, kb=kb, b=b):
                    if b == 0: E.e(f"s_add_u32 s{sT}, s{sXN}, {kb*4096}")
                    E.vmem(f"buffer_load_dwordx4 {a4(XF(kb,b))}, v{vL16}, {s4(SWS)}, s{sT} offen offset:{b*1024}", f"c{j}")
                ops.append(op)
        return ops
    def dma_unit0(u):
        ops = []
        for i in range(4):
            def op(E, i=i):
                if i == 0:
                    E.e(f"s_add_u32 m0, s{sWl}, {u*16384}")
                    E.e("s_nop 0")
                E.vmem(f"buffer_load_dwordx4 v{vL16}, {s4(SKV)}, s{sSrc0} offen offset:{i*1024} lds", f"u{u}")
                if i == 3: E.e(f"s_add_u32 s{sSrc0}, s{sSrc0}, 8192")
            ops.append(op)
        return ops
    for j in range(5):
        for op in dma_w(j) + ld_xn(j): op(E)
    E.wait_vm("c0")
    E.e("s_barrier")
    W = Weave()
    S = Stream(W, lead=20, age=10, maxper=1)
    BARPOS = 46
    ring_last = {}
    fi = 0
    for j in range(8):
        ea = -10**9 if j == 0 else (j - 1) * 64 + BARPOS
        for ks in range(2):
            kb = 2 * j + ks
            for c in range(8):
                base = len(W.bb)
                r = WF + (fi % 8) * 4
                off = (j % 4) * 16384 + ks * 8192
                S.read(f"wf{fi}", [f"ds_read_b64_tr_b16 {v2(r)}, v{vW+c} offset:{off}", f"ds_read_b64_tr_b16 {v2(r+2)}, v{vW+c} offset:{off+1024}"],
                       base, max(ea, ring_last.get(fi % 8, -10**9)), latest=j * 64 + BARPOS)
                ring_last[fi % 8] = base + 3
                fi += 1
                for b in range(4):
                    W.mf(f"{MFMA} {v4(QT(c,b))}, {v4(r)}, {a4(XF(kb,b))}, {'0' if kb == 0 else v4(QT(c,b))}")
    def spread(ops, s0, s1):
        n = len(ops)
        for k, op in enumerate(ops): W.add(s0 + (k * (s1 - s0)) // n, op)
    def barrier_at(slot, vmtags):
        def f(E):
            E.wait_vm(*vmtags)
            E.e("s_waitcnt lgkmcnt(0)"); E.lg = []
            E.e("s_barrier")
        W.post[slot].insert(0, f)
    for j in range(8):
        bs = j * 64 + BARPOS
        barrier_at(bs, [f"c{j+1}"] if j < 7 else ["u0"])
    spread(dma_w(5) + ld_xn(5), 2, 44)
    spread(dma_w(6) + ld_xn(6), 64 + 2, 64 + 44)
    spread(dma_w(7) + ld_xn(7), 128 + 2, 128 + 44)
    spread(dma_unit0(0) + dma_unit0(1), 192 + 2, 192 + 44)
    spread(dma_unit0(2) + dma_unit0(3), 256 + 2, 256 + 44)
    def win2(E):
        for c in range(8): E.e(f"v_add_u32 v{vW+c}, 0x10000, v{vW+c}")
    W.post[3 * 64 + BARPOS].insert(1, win2)
    pend = []
    for t in range(4):
        for b in range(4):
            for h in range(4):
                src = QT(2 * t + (h >> 1), b) + (h & 1) * 2
                pend.append((480 + 4 * (2 * t + 1) + b + 5, f"v_cvt_pk_bf16_f32 v{QV(b,t)+h}, v{src}, v{src+1}"))
    tail = []
    cnt = {}
    for sl, tx in pend:
        while sl < 512 and cnt.get(sl, 0) >= 2: sl += 1
        if sl < 512:
            W.add(sl, tx); cnt[sl] = cnt.get(sl, 0) + 1
        else: tail.append(tx)
    S.place(E)
    W.emit(E)
    for i in range(8):
        E.lds(f"ds_read_b128 {a4(KF(i))}, v{vRd} offset:{i*1024}", "k")
    E.e("s_nop 1")
    for tx in tail: E.e(tx)
    for k in range(4): E.e(f"v_mov_b32 v{ONES+k}, 0x3f803f80")
    for k in range(16): E.e(f"v_mov_b32 v{LS(0)+k}, 0")
    for k in range(4): E.e(f"v_mov_b32 v{NEGM+k}, 0")
    E.e(f"v_and_b32 v{vT}, 15, v{vLane}")
    E.e(f"v_lshrrev_b32 v{vT+1}, 4, v{vLane}")
    E.e(f"v_lshlrev_b32 v{vT+1}, 2, v{vT+1}")
    E.e(f"v_sub_u32 v{vT}, v{vT}, v{vT+1}")
    E.e(f"v_mov_b32 v{vT+2}, {BIGNEG}")
    for r in range(4):
        E.e(f"v_cmp_gt_i32 vcc, {r}, v{vT}")
        E.e("s_nop 1")
        E.e(f"v_cndmask_b32 v{DM+r}, 0, v{vT+2}, vcc")
    E.e(f"s_cmp_ge_u32 s{sW}, 2")
    E.e(f"s_cbranch_scc1 {N}_noq")
    E.e(f"s_lshl_b32 s{sT}, s{sW}, 14")
    E.e(f"s_add_u32 s{sT}, s{sT}, {L_QX}")
    E.e(f"v_add_u32 v{vT}, s{sT}, v{vL16}")
    for k in range(16): E.e(f"ds_write_b128 v{vT}, {v4(192+4*k)} offset:{k*1024}")
    E.e(f"{N}_noq:")
    def zero_O(E):
        for k in range(4): E.e(f"v_mov_b32 v{vT+4+k}, 0")
        E.e("s_nop 1")
        for c in range(8):
            for b in range(4):
                E.e(f"{MFMA} {a4(O(c,b))}, {v4(vT+4)}, {v4(vT+4)}, 0")
    assert (vT + 4) % 2 == 0
    zero_O(E)

    def pattern(E, kind):
        for a in range(2):
            for b in range(4):
                rel = (16 * a + (32 if kind == 2 else 0)) - 16 * b if kind else -1
                for r in range(4):
                    if rel < 0: E.e(f"v_mov_b32 v{IN(a,b)+r}, v{NEGM+b}")
                    elif rel == 0: E.e(f"v_add_f32 v{IN(a,b)+r}, v{NEGM+b}, v{DM+r}")
                    else: E.e(f"v_mov_b32 v{IN(a,b)+r}, {BIGNEG}")
    pattern(E, 0)
    E.e(f"s_cmp_lg_u32 s{eP1}, 0")
    E.e(f"s_cbranch_scc1 {N}_fill")
    pattern(E, 1)
    E.e(f"{N}_fill:")

    SM0 = 22
    def sm_ops(par):
        ops = []
        k = 0
        for a in range(2):
            for b in range(4):
                for r in range(4):
                    reg = Sb(par, a, b) + r
                    ops.append((SM0 + 2 * k, f"v_exp_f32 v{reg}, v{reg}"))
                    if r & 1:
                        ops.append((SM0 + 2 * k + 1, f"v_cvt_pk_bf16_f32 v{Pb(par,b)+a*2+r//2}, v{reg-1}, v{reg}"))
                    k += 1
        return ops
    def sm_batch(E, ops):
        for tx in ops:
            if "v_exp" in tx: E.e(tx)
        E.e("s_nop 0")
        for tx in ops:
            if "v_exp" not in tx: E.e(tx)
    def qk_mf(par):
        L = []
        for a in range(2):
            for t in range(4):
                for b in range(4):
                    c = v4(IN(a, b)) if t == 0 else v4(Sb(par, a, b))
                    L.append(f"{MFMA} {v4(Sb(par,a,b))}, {a4(KF(a*4+t))}, {v4(QV(b,t))}, {c}")
        return L
    def pv_mf(par):
        pp = par ^ 1
        L = []
        for c in range(8):
            for b in range(4):
                L.append(f"{MFMA} {a4(O(c,b))}, {a4(VF(c))}, {v4(Pb(pp,b))}, {a4(O(c,b))}")
            if c == 3:
                for b in range(4):
                    L.append(f"{MFMA} {v4(LS(b))}, {v4(ONES)}, {v4(Pb(pp,b))}, {v4(LS(b))}")
        return L
    rdK = lambda i: f"ds_read_b128 {a4(KF(i))}, v{vRd} offset:{i*1024}"
    rdV = lambda c: f"ds_read_b128 {a4(VF(c))}, v{vRd} offset:{8192 + c*1024}"
    def mid(dual, vm=None):
        n = vm if vm is not None else (16 if dual else 8)
        return [f"s_waitcnt vmcnt({n}) lgkmcnt(0)", "s_barrier"]
    adv = [f"s_mov_b32 m0, s{sRP}", f"s_add_u32 s{sRP}, s{sRP}, 0x4000", f"s_and_b32 s{sRP}, s{sRP}, 0xffff",
           f"v_bfi_b32 v{vRd}, v{vMask}, s{sRP}, v{vRd}"]
    dma0 = [f"buffer_load_dwordx4 v{vL16}, {s4(SKV)}, s{sSrc0} offen offset:{i*1024} lds" for i in range(4)]
    dma1 = [f"buffer_load_dwordx4 v{vL16}, {s4(SKV)}, s{sSrc1} offen offset:{i*1024} lds" for i in range(4)]
    adv0 = f"s_add_u32 s{sSrc0}, s{sSrc0}, 8192"
    adv1 = f"s_sub_u32 s{sSrc1}, s{sSrc1}, 8192"
    m1 = "s_add_u32 m0, m0, 0x10000"

    def full_body(E, par, dual):
        W = Weave()
        for m in qk_mf(par) + pv_mf(par): W.mf(m)
        for g, tx in sm_ops(par):
            if g < 68: W.add(g, tx)
        for g, tx in sm_ops(par ^ 1):
            if g >= 68: W.add(g - 68, tx)
        W.pre(0, "s_waitcnt lgkmcnt(4)")
        for c in range(4, 8): W.add(1 + 4 * (c - 4) + 2, rdV(c))
        for x in mid(dual): W.pre(32, x)
        W.add(32, adv[0]); W.add(33, adv[1]); W.add(33, adv[2]); W.add(34, adv[3])
        gK = [35, 37, 39, 41, 43, 45, 47, 49]
        for i in range(8): W.add(gK[i], rdK(i))
        gV = [55, 59, 63, 65]
        for c in range(4): W.add(gV[c], rdV(c))
        if dual:
            g0 = [36, 40, 44, 48]; g1 = [52, 56, 60, 64]
            for i in range(4): W.add(g0[i], dma0[i])
            W.add(50, adv0); W.add(51, m1)
            for i in range(4): W.add(g1[i], dma1[i])
            W.add(66, adv1)
        else:
            g0 = [40, 48, 53, 61]
            for i in range(4): W.add(g0[i], dma0[i])
            W.add(63, adv0)
        W.add(67, f"s_sub_u32 s{sCnt}, s{sCnt}, 1")
        W.emit(E)
        E.e(f"s_cbranch_scc1 {N}_event")

    def post_mid(E, dual_always, reads=True):
        for x in adv: E.e(x)
        if reads:
            for i in range(8): E.e(rdK(i))
        for x in dma0: E.e(x)
        E.e(adv0)
        if not dual_always:
            E.e(f"s_cmp_lg_u32 s{eSw}, 0")
            E.e(f"s_cbranch_scc1 {N}_fill_nodual")
        E.e(m1); E.e("s_nop 0")
        for x in dma1: E.e(x)
        E.e(adv1)
        if not dual_always:
            E.e(f"s_mov_b32 s{sDual}, 1")
            E.e(f"{N}_fill_nodual:")

    E.e("s_waitcnt lgkmcnt(0)")
    for m in qk_mf(0): E.e(m)
    for x in mid(False, vm=4): E.e(x)
    post_mid(E, False)
    for c in range(4): E.e(rdV(c))
    MX = vT
    for b in range(4):
        s0, s1 = Sb(0, 0, b), Sb(0, 1, b)
        E.e(f"v_max3_f32 v{MX+b}, v{s0}, v{s0+1}, v{s0+2}")
        E.e(f"v_max3_f32 v{MX+b}, v{MX+b}, v{s0+3}, v{s1}")
        E.e(f"v_max3_f32 v{MX+b}, v{MX+b}, v{s1+1}, v{s1+2}")
        E.e(f"v_max_f32 v{MX+b}, v{MX+b}, v{s1+3}")
    for sw in ("v_permlane16_swap_b32", "v_permlane32_swap_b32"):
        for b in range(4): E.e(f"v_mov_b32 v{MX+4+b}, v{MX+b}")
        E.e("s_nop 1")
        for b in range(4): E.e(f"{sw} v{MX+b}, v{MX+4+b}")
        for b in range(4): E.e(f"v_max_f32 v{MX+b}, v{MX+b}, v{MX+4+b}")
    for b in range(4): E.e(f"v_sub_f32 v{NEGM+b}, 0, v{MX+b}")
    for b in range(4):
        for k in range(8): E.e(f"v_add_f32 v{Sb(0,0,b)+k}, v{Sb(0,0,b)+k}, v{NEGM+b}")
    E.e(f"s_lshl_b32 s{sT}, s{sW}, 10")
    E.e(f"s_add_u32 s{sT}, s{sT}, {L_NM}")
    E.e(f"v_add_u32 v{vT+8}, s{sT}, v{vL16}")
    E.e(f"ds_write_b128 v{vT+8}, {v4(NEGM)}")
    E.e(f"s_sub_u32 s{sT}, 3, s{sW}")
    E.e(f"s_and_b32 s{sT}, s{sT}, 1")
    E.e(f"s_lshl_b32 s{sT}, s{sT}, 14")
    E.e(f"s_add_u32 s{sT}, s{sT}, {L_QX}")
    E.e(f"v_add_u32 v{vT+9}, s{sT}, v{vL16}")
    for k in range(16): E.e(f"ds_read_b128 {a4(128+4*k)}, v{vT+9} offset:{k*1024}")
    sm_batch(E, [tx for g, tx in sm_ops(0) if g < 68])
    pattern(E, 0)
    E.e("s_waitcnt lgkmcnt(0)")
    E.e("s_barrier")
    E.e(f"s_sub_u32 s{sT}, 3, s{sW}")
    E.e(f"s_lshl_b32 s{sT}, s{sT}, 10")
    E.e(f"s_add_u32 s{sT}, s{sT}, {L_NM}")
    E.e(f"v_add_u32 v{vT+8}, s{sT}, v{vL16}")
    E.e(f"ds_read_b128 {v4(NEGA)}, v{vT+8}")
    E.e("s_waitcnt lgkmcnt(0)")
    E.e(f"s_mov_b32 s{sEv}, 1")

    E.e(f"{N}_event:")
    E.e(f"s_cmp_eq_u32 s{sEv}, s{eDr}")
    E.e(f"s_cbranch_scc1 {N}_drain")
    E.e(f"s_cmp_lg_u32 s{sEv}, s{eSw}")
    E.e(f"s_cbranch_scc1 {N}_ev1")
    E.e("s_waitcnt vmcnt(4)")
    E.e(f"s_mov_b32 s{sDual}, 1")
    E.e(f"{N}_ev1:")
    E.e(f"s_cmp_lg_u32 s{sEv}, s{eP1}")
    E.e(f"s_cbranch_scc1 {N}_ev2")
    pattern(E, 1)
    E.e(f"{N}_ev2:")
    E.e(f"s_cmp_lg_u32 s{sEv}, s{eP2}")
    E.e(f"s_cbranch_scc1 {N}_ev3")
    pattern(E, 2)
    E.e(f"{N}_ev3:")
    E.e(f"s_cmp_lg_u32 s{sEv}, s{ePl}")
    E.e(f"s_cbranch_scc1 {N}_ev4")
    pattern(E, 0)
    E.e(f"{N}_ev4:")
    E.e(f"s_mov_b32 s{sT}, s{eDr}")
    for ev in (eSw, eP1, eP2, ePl):
        E.e(f"s_cmp_gt_u32 s{ev}, s{sEv}")
        E.e(f"s_cselect_b32 s{sT2}, s{ev}, 100")
        E.e(f"s_min_u32 s{sT}, s{sT}, s{sT2}")
    E.e(f"s_sub_u32 s{sCnt}, s{sT}, s{sEv}")
    E.e(f"s_sub_u32 s{sCnt}, s{sCnt}, 1")
    E.e(f"s_and_b32 s{sT2}, s{sEv}, 1")
    E.e(f"s_mov_b32 s{sEv}, s{sT}")
    E.e(f"s_cmp_eq_u32 s{sDual}, 1")
    E.e(f"s_cbranch_scc1 {N}_ev5")
    E.e(f"s_cmp_eq_u32 s{sT2}, 1")
    E.e(f"s_cbranch_scc1 {N}_O1")
    E.e(f"s_branch {N}_E1")
    E.e(f"{N}_ev5:")
    E.e(f"s_cmp_eq_u32 s{sT2}, 1")
    E.e(f"s_cbranch_scc1 {N}_O2")
    E.e(f"s_branch {N}_E2")

    marks = {}
    for dual in (0, 1):
        E.e(".p2align 6")
        marks[("O", dual)] = len(E.L)
        E.e(f"{N}_O{dual+1}:")
        full_body(E, 1, dual)
        marks[("E", dual)] = len(E.L)
        E.e(f"{N}_E{dual+1}:")
        full_body(E, 0, dual)
        E.e(f"s_branch {N}_O{dual+1}")
        marks[("X", dual)] = len(E.L)

    E.e(f"{N}_drain:")
    for c in range(4, 8): E.e(rdV(c))
    sm_batch(E, [tx for g, tx in sm_ops(1) if g >= 68])
    E.e(f"s_cmp_eq_u32 s{eDr}, 34")
    E.e(f"s_cbranch_scc1 {N}_final")
    for x in mid(True): E.e(x)
    W = Weave()
    for m in pv_mf(0): W.mf(m)
    W.add(0, adv[0]); W.add(1, adv[1]); W.add(1, adv[2]); W.add(2, adv[3])
    for i in range(4): W.add(4 + 3 * i, dma0[i])
    W.add(15, adv0); W.add(16, m1)
    for i in range(4): W.add(18 + 3 * i, dma1[i])
    W.add(30, adv1)
    W.emit(E)
    def normalize_store(E, cs, sbase, add_from=None, split=None):
        k = 0
        for t in sorted(set(c // 2 for c in cs)):
            for b in range(4):
                tmp = (k % 4) * 8 + (64 if add_from is not None else 0)
                for h in range(2):
                    for r in range(4):
                        E.e(f"v_accvgpr_read_b32 v{tmp+h*4+r}, a{O(2*t+h,b)+r}")
                if add_from is not None:
                    for h in range(2):
                        src = add_from(2 * t + h, b)
                        for r in range(0, 4, 2):
                            E.e(f"v_pk_add_f32 {v2(tmp+h*4+r)}, {v2(tmp+h*4+r)}, {v2(src+r)}")
                for r in range(0, 8, 2):
                    E.e(f"v_pk_mul_f32 {v2(tmp+r)}, {v2(tmp+r)}, {v2(RV+2*b)}")
                for r in range(4):
                    E.e(f"v_cvt_pk_bf16_f32 v{tmp+r}, v{tmp+2*r}, v{tmp+2*r+1}")
                if b == 0: E.e(f"s_add_u32 s{sT}, s{sbase}, {t*4096}")
                E.e(f"buffer_store_dwordx4 {v4(tmp)}, v{vL16}, {s4(SWS)}, s{sT} offen offset:{b*1024}{stflag}")
                k += 1
                if split is not None and k == split[0]: split[1](E)
    RV = vT
    assert RV % 2 == 0
    def rinv(E):
        for b in range(4): E.e(f"v_rcp_f32 v{RV+2*b}, v{LS(b)}")
        E.e("s_nop 0")
        for b in range(4): E.e(f"v_mov_b32 v{RV+2*b+1}, v{RV+2*b}")
    E.e("s_nop 7")
    rinv(E)
    def epi_mid(E):
        for x in mid(True): E.e(x)
        for x in adv[:3]: E.e(x)
        E.e(f"v_or_b32 v{vRd}, 0x10000, v{vRd}")
        E.e(adv[3])
        for i in range(8): E.e(rdK(i))
        for x in dma0: E.e(x)
        E.e(adv0); E.e(m1); E.e("s_nop 0")
        for x in dma1: E.e(x)
        E.e(adv1)
    normalize_store(E, range(8), sTgO, split=(6, epi_mid))
    for k in range(64): E.e(f"v_accvgpr_read_b32 v{192+k}, a{128+k}")
    for k in range(4): E.e(f"v_mov_b32 v{NEGM+k}, v{NEGA+k}")
    for k in range(16): E.e(f"v_mov_b32 v{LS(0)+k}, 0")
    zero_O(E)
    E.e(f"s_add_u32 s{sEv}, s{eDr}, 3")
    E.e(f"s_mov_b32 s{eP1}, s{sEv}")
    E.e(f"s_add_u32 s{ePl}, s{eDr}, 4")
    E.e(f"s_mov_b32 s{eP2}, 100")
    E.e(f"s_cmp_eq_u32 s{eDr}, 32")
    E.e(f"s_mov_b32 s{eDr}, 34")
    E.e(f"s_cbranch_scc1 {N}_idle34")
    pattern(E, 2)
    E.e("s_waitcnt lgkmcnt(0)")
    for m in qk_mf(0): E.e(m)
    for x in mid(True): E.e(x)
    post_mid(E, True)
    for c in range(4): E.e(rdV(c))
    sm_batch(E, [tx for g, tx in sm_ops(0) if g < 68])
    E.e(f"s_branch {N}_event")

    E.e(f"{N}_idle34:")
    for x in mid(True, vm=0): E.e(x)
    E.e(f"s_branch {N}_merge")
    E.e(f"{N}_final:")
    for x in mid(True, vm=0): E.e(x)
    for m in pv_mf(0): E.e(m)
    E.e(f"{N}_merge:")
    E.e(f"s_lshl_b32 s{sT}, s{sW}, 14")
    E.e(f"v_add_u32 v{vT+8}, s{sT}, v{vL16}")
    E.e(f"s_sub_u32 s{sT2}, 3, s{sW}")
    E.e(f"s_lshl_b32 s{sT}, s{sT2}, 14")
    E.e(f"v_add_u32 v{vT+9}, s{sT}, v{vL16}")
    E.e(f"s_lshl_b32 s{sT}, s{sW}, 10")
    E.e(f"s_add_u32 s{sT}, s{sT}, 65536")
    E.e(f"v_add_u32 v{vT+10}, s{sT}, v{vL16}")
    E.e(f"s_lshl_b32 s{sT}, s{sT2}, 10")
    E.e(f"s_add_u32 s{sT}, s{sT}, 65536")
    E.e(f"v_add_u32 v{vT+11}, s{sT}, v{vL16}")
    for b in range(4): E.e(f"v_mov_b32 v{NEGM+b}, v{LS(b)}")
    E.e(f"ds_write_b128 v{vT+10}, {v4(NEGM)}")
    E.e(f"s_cmp_ge_u32 s{sW}, 2")
    E.e(f"s_cbranch_scc1 {N}_merge_hi")
    for keep, lab in ((0, ""), (1, "_hi")):
        if keep: E.e(f"{N}_merge_hi:")
        send = 64 * (1 - keep)
        for k in range(16): E.e(f"ds_write_b128 v{vT+8}, {a4(send + 4*k)} offset:{k*1024}")
        E.e("s_waitcnt lgkmcnt(0)")
        E.e("s_barrier")
        E.e(f"ds_read_b128 {v4(NEGA)}, v{vT+11}")
        for k in range(16): E.e(f"ds_read_b128 {v4(4*k)}, v{vT+9} offset:{k*1024}")
        E.e("s_waitcnt lgkmcnt(0)")
        for b in range(4): E.e(f"v_add_f32 v{LS(b)}, v{NEGM+b}, v{NEGA+b}")
        rinv(E)
        normalize_store(E, range(4 * keep, 4 * keep + 4), sTgA, add_from=lambda c, b: O(c, b) - 64 * keep)
        if not keep: E.e("s_endpgm")
    E.e(f"{N}_end:")
    E.e("s_endpgm")
    for p in check(E.L, name): print("HAZARD", p)
    for dual in (0, 1):
        body = E.L[marks[("O", dual)]:marks[("X", dual)]]
        for p in check(body + body, name + f" loop{dual}"): print("HAZARD", p)
    return head(name) + E.text(), kd(name, 512, 256, 96)

if __name__ == "__main__":
    t, k = gen_k2()
    print(len(t.splitlines()))
```

```python
from common import *

def gen_k3(name="k3_kernel"):
    E = Em()
    SX, SWS, SO = 20, 24, 28
    sW, sTg, sMg, sT, sT2, sA, sB = 32, 33, 34, 35, 36, 37, 38
    sIDX = 40
    ACC = 0
    RING = 64
    vL16, vLane, vT = 192, 193, 194
    vX, vXN = 200, 204
    vRow, vCg = 208, 209
    vY = 212
    vSig = 220
    DEPTH = 4
    E.e("s_cmp_ge_u32 s2, 256")
    E.e(f"s_cbranch_scc1 {name}_end")
    E.e("s_load_dwordx2 s[4:5], s[0:1], 0")
    E.e("s_load_dwordx2 s[6:7], s[0:1], 88")
    E.e("s_load_dwordx2 s[8:9], s[0:1], 104")
    E.e(f"v_and_b32 v{vLane}, 63, v0")
    E.e(f"v_lshrrev_b32 v{vT}, 6, v0")
    E.e(f"v_lshlrev_b32 v{vL16}, 4, v{vLane}")
    E.e(f"v_readfirstlane_b32 s{sW}, v{vT}")
    E.e(f"v_lshrrev_b32 v{vRow}, 3, v0")
    E.e(f"v_and_b32 v{vCg}, 7, v0")
    E.e(f"s_and_b32 s{sT}, s2, 7")
    E.e(f"s_lshr_b32 s{sT2}, s2, 3")
    E.e(f"s_and_b32 s{sMg}, s{sT2}, 7")
    E.e(f"s_lshr_b32 s{sT2}, s{sT2}, 3")
    E.e(f"s_lshl_b32 s{sTg}, s{sT}, 2")
    E.e(f"s_add_u32 s{sTg}, s{sTg}, s{sT2}")
    E.e(f"s_lshl_b32 s{sT}, s{sW}, 16")
    E.e(f"s_lshl_b32 s{sA}, s{sMg}, 19")
    E.e(f"s_add_u32 s{sA}, s{sA}, s{sT}")
    E.e(f"s_add_u32 s{sA}, s{sA}, {hex(WS_WOF)}")
    E.e(f"s_lshl_b32 s{sB}, s{sTg}, 19")
    E.e(f"s_add_u32 s{sB}, s{sB}, s{sT}")
    E.e(f"s_add_u32 s{sB}, s{sB}, {hex(WS_CTX)}")
    E.e("s_waitcnt lgkmcnt(0)")
    srd(E, SX, 4, 0x200000); srd(E, SWS, 8, WS_SIZE); srd(E, SO, 6, 0x200000)
    E.e(f"s_add_u32 s10, s8, {hex(WS_IDX)}")
    E.e(f"s_addc_u32 s11, s9, 0")
    E.e(f"s_load_dwordx8 s[{sIDX}:{sIDX+7}], s[10:11], 0")
    RA = lambda ks, t: RING + ((ks % DEPTH) * 8 + t) * 4
    RB = lambda ks, t: RING + ((ks % DEPTH) * 8 + 4 + t) * 4
    def loads(ks):
        ops = []
        for t in range(4):
            def opb(E, t=t):
                if t == 0: E.e(f"s_add_u32 s{sT2}, s{sB}, {ks*4096}")
                E.vmem(f"buffer_load_dwordx4 {v4(RB(ks,t))}, v{vL16}, {s4(SWS)}, s{sT2} offen offset:{t*1024}", f"k{ks}")
            ops.append(opb)
        for t in range(4):
            def opa(E, t=t):
                if t == 0: E.e(f"s_add_u32 s{sT}, s{sA}, {ks*4096}")
                E.vmem(f"buffer_load_dwordx4 {v4(RA(ks,t))}, v{vL16}, {s4(SWS)}, s{sT} offen offset:{t*1024}", f"k{ks}")
            ops.append(opa)
        return ops
    for ks in range(DEPTH):
        for op in loads(ks): op(E)
    W = Weave()
    for ks in range(16):
        base = len(W.bb)
        for mt in range(4):
            for qt in range(4):
                acc = v4(ACC + (mt * 4 + qt) * 4)
                W.mf(f"{MFMA} {acc}, {v4(RA(ks,mt))}, {v4(RB(ks,qt))}, {'0' if ks == 0 else acc}")
        W.pre(base, (lambda ks: lambda E: E.wait_vm(f"k{ks}"))(ks))
    for ks in range(16 - DEPTH):
        ops = loads(ks + DEPTH)
        for k, op in enumerate(ops):
            W.add((ks + 1) * 16 + k if (ks + 1) * 16 + k < 256 else 255, op)
    def epi_loads(E):
        E.e(f"v_lshlrev_b32 v{vT}, 10, v{vRow}")
        E.e(f"v_lshl_add_u32 v{vT}, v{vCg}, 4, v{vT}")
        E.e(f"s_lshl_b32 s{sT}, s{sTg}, 16")
        E.e(f"s_lshl_b32 s{sT2}, s{sMg}, 7")
        E.e(f"s_add_u32 s{sA}, s{sT}, s{sT2}")
        E.vmem(f"buffer_load_dwordx4 {v4(vX)}, v{vT}, {s4(SX)}, s{sA} offen", "ep")
        E.e(f"v_lshrrev_b32 v{vT+1}, 2, v{vCg}")
        E.e(f"v_lshlrev_b32 v{vT+1}, 12, v{vT+1}")
        E.e(f"v_lshrrev_b32 v{vT+2}, 4, v{vRow}")
        E.e(f"v_lshl_add_u32 v{vT+1}, v{vT+2}, 10, v{vT+1}")
        E.e(f"v_and_b32 v{vT+2}, 3, v{vCg}")
        E.e(f"v_lshl_add_u32 v{vT+1}, v{vT+2}, 8, v{vT+1}")
        E.e(f"v_and_b32 v{vT+2}, 15, v{vRow}")
        E.e(f"v_lshl_add_u32 v{vT+1}, v{vT+2}, 4, v{vT+1}")
        E.e(f"s_lshl_b32 s{sT2}, s{sMg}, 13")
        E.e(f"s_add_u32 s{sT}, s{sT}, s{sT2}")
        E.vmem(f"buffer_load_dwordx4 {v4(vXN)}, v{vT+1}, {s4(SWS)}, s{sT} offen", "ep")
    W.add(13 * 16 + 10, epi_loads)
    W.emit(E)
    E.e(f"v_and_b32 v{vT+1}, 15, v{vLane}")
    E.e(f"v_mul_u32_u24 v{vT+1}, 272, v{vT+1}")
    E.e(f"v_lshrrev_b32 v{vT+2}, 4, v{vLane}")
    E.e(f"v_lshl_add_u32 v{vT+1}, v{vT+2}, 4, v{vT+1}")
    E.e(f"s_mul_i32 s{sT}, s{sW}, 17408")
    E.e(f"v_add_u32 v{vT+1}, s{sT}, v{vT+1}")
    E.e("s_nop 3")
    for mt in range(4):
        for qt in range(4):
            E.lds(f"ds_write_b128 v{vT+1}, {v4(ACC + (mt*4+qt)*4)} offset:{qt*16*272 + mt*64}", "w")
    for k in range(8): E.e(f"v_mov_b32 v{vY+k}, 0")
    E.e(f"s_lshl_b32 s{sT}, s{sTg}, 6")
    E.e(f"v_add_u32 v{vT+2}, s{sT}, v{vRow}")
    E.e(f"v_sub_u32 v{vT+2}, 2047, v{vT+2}")
    E.e(f"v_mov_b32 v{vT+3}, -1")
    E.e(f"v_mov_b32 v{vSig}, 0")
    E.e("s_waitcnt lgkmcnt(0)"); E.lg = []
    for k in range(8):
        E.e(f"s_and_b32 s{sT}, s{sIDX+k}, 0xffff")
        E.e(f"v_cmp_eq_u32 vcc, s{sT}, v{vT+2}")
        E.e(f"v_mov_b32 v{vT+4}, s{sIDX+k}")
        E.e(f"v_mov_b32 v{vT+5}, {k}")
        E.e(f"v_cndmask_b32 v{vSig}, v{vSig}, v{vT+4}, vcc")
        E.e(f"v_cndmask_b32 v{vT+3}, v{vT+3}, v{vT+5}, vcc")
    E.e(f"v_cmp_le_i32 vcc, 0, v{vT+3}")
    E.e(f"s_and_saveexec_b64 s[48:49], vcc")
    E.e(f"s_cbranch_execz {name}_noupd")
    E.e(f"v_lshlrev_b32 v{vT+3}, 11, v{vT+3}")
    E.e(f"v_lshl_add_u32 v{vT+3}, v{vCg}, 5, v{vT+3}")
    E.e(f"s_lshl_b32 s{sT}, s{sMg}, 8")
    E.e(f"s_add_u32 s{sT}, s{sT}, {hex(WS_YP)}")
    E.e(f"s_mov_b32 s{sT2}, 0")
    E.e(f"{name}_yl:")
    E.e(f"buffer_load_dwordx4 {v4(64)}, v{vT+3}, {s4(SWS)}, s{sT} offen")
    E.e(f"buffer_load_dwordx4 {v4(68)}, v{vT+3}, {s4(SWS)}, s{sT} offen offset:16")
    E.e(f"s_add_u32 s{sT}, s{sT}, 16384")
    E.e(f"s_add_u32 s{sT2}, s{sT2}, 1")
    E.e(f"s_cmp_lt_u32 s{sT2}, {NP}")
    E.e("s_waitcnt vmcnt(0)")
    for k in range(8): E.e(f"v_add_f32 v{vY+k}, v{vY+k}, v{64+k}")
    E.e(f"s_cbranch_scc1 {name}_yl")
    E.e(f"v_and_b32 v{vSig}, 0xffff0000, v{vSig}")
    E.e(f"v_ashrrev_i32 v{vT+4}, 31, v{vSig}")
    E.e(f"v_not_b32 v{vT+4}, v{vT+4}")
    E.e(f"v_or_b32 v{vT+4}, 0x80000000, v{vT+4}")
    E.e(f"v_xor_b32 v{vSig}, v{vSig}, v{vT+4}")
    E.e(f"v_and_b32 v{vSig}, 0xffff0000, v{vSig}")
    E.e(f"v_mul_f32 v{vSig}, 0xbfb8aa3b, v{vSig}")
    E.e(f"v_exp_f32 v{vSig}, v{vSig}")
    E.e("s_nop 0")
    E.e(f"v_add_f32 v{vSig}, 1.0, v{vSig}")
    E.e(f"v_rcp_f32 v{vSig}, v{vSig}")
    E.e("s_nop 0")
    E.e(f"v_cvt_pk_bf16_f32 v{vSig}, v{vSig}, v{vSig}")
    E.e(f"v_lshlrev_b32 v{vSig}, 16, v{vSig}")
    for k in range(4):
        E.e(f"v_cvt_pk_bf16_f32 v{64+k}, v{vY+2*k}, v{vY+2*k+1}")
    for k in range(4):
        E.e(f"v_lshlrev_b32 v{vY+2*k}, 16, v{64+k}")
        E.e(f"v_and_b32 v{vY+2*k+1}, 0xffff0000, v{64+k}")
    for k in range(8): E.e(f"v_mul_f32 v{vY+k}, v{vY+k}, v{vSig}")
    for k in range(4):
        E.e(f"v_cvt_pk_bf16_f32 v{64+k}, v{vY+2*k}, v{vY+2*k+1}")
    for k in range(4):
        E.e(f"v_lshlrev_b32 v{vY+2*k}, 16, v{64+k}")
        E.e(f"v_and_b32 v{vY+2*k+1}, 0xffff0000, v{64+k}")
    E.e(f"{name}_noupd:")
    E.e("s_mov_b64 exec, s[48:49]")
    E.e("s_barrier")
    E.e(f"v_mul_u32_u24 v{vT+1}, 272, v{vRow}")
    E.e(f"v_lshl_add_u32 v{vT+1}, v{vCg}, 5, v{vT+1}")
    E.e(f"v_add_u32 v{vT+2}, {4*17408}, v{vT+1}")
    for w in range(8):
        a = vT + 1 if w < 4 else vT + 2
        E.lds(f"ds_read_b128 {v4(w*8)}, v{a} offset:{(w%4)*17408}", f"r{w}")
        E.lds(f"ds_read_b128 {v4(w*8+4)}, v{a} offset:{(w%4)*17408+16}", f"r{w}")
        if w == 6: E.wait_lg("r0")
    for w in range(1, 8):
        E.wait_lg(f"r{w}")
        for k in range(8): E.e(f"v_add_f32 v{k}, v{k}, v{w*8+k}")
    E.e("s_waitcnt vmcnt(0)"); E.vm = []
    for k in range(4): E.e(f"v_cvt_pk_bf16_f32 v{8+k}, v{2*k}, v{2*k+1}")
    for k in range(4):
        E.e(f"v_lshlrev_b32 v{2*k}, 16, v{8+k}")
        E.e(f"v_and_b32 v{2*k+1}, 0xffff0000, v{8+k}")
        E.e(f"v_lshlrev_b32 v{16+2*k}, 16, v{vX+k}")
        E.e(f"v_and_b32 v{16+2*k+1}, 0xffff0000, v{vX+k}")
        E.e(f"v_lshlrev_b32 v{24+2*k}, 16, v{vXN+k}")
        E.e(f"v_and_b32 v{24+2*k+1}, 0xffff0000, v{vXN+k}")
    for k in range(8):
        E.e(f"v_add_f32 v{k}, v{k}, v{16+k}")
        E.e(f"v_add_f32 v{24+k}, v{24+k}, v{vY+k}")
    for k in range(4):
        E.e(f"v_cvt_pk_bf16_f32 v{8+k}, v{2*k}, v{2*k+1}")
        E.e(f"v_cvt_pk_bf16_f32 v{12+k}, v{24+2*k}, v{24+2*k+1}")
    for k in range(4):
        E.e(f"v_lshlrev_b32 v{2*k}, 16, v{8+k}")
        E.e(f"v_and_b32 v{2*k+1}, 0xffff0000, v{8+k}")
        E.e(f"v_lshlrev_b32 v{24+2*k}, 16, v{12+k}")
        E.e(f"v_and_b32 v{24+2*k+1}, 0xffff0000, v{12+k}")
    for k in range(8): E.e(f"v_add_f32 v{k}, v{k}, v{24+k}")
    for k in range(4): E.e(f"v_cvt_pk_bf16_f32 v{8+k}, v{2*k}, v{2*k+1}")
    E.e(f"buffer_store_dwordx4 {v4(8)}, v{vT}, {s4(SO)}, s{sA} offen")
    E.e(f"{name}_end:")
    E.e("s_endpgm")
    for p in check(E.L, name): print("HAZARD", p)
    return head(name) + E.text(), kd(name, 224, 224, 96)

if __name__ == "__main__":
    t, k = gen_k3()
    print(len(t.splitlines()))
```

```python
from common import *

def wave_max_u32(E, r, t):
    for mod in ("quad_perm:[1,0,3,2]", "quad_perm:[2,3,0,1]", "row_half_mirror", "row_mirror"):
        E.e("s_nop 1")
        E.e(f"v_max_u32_dpp v{r}, v{r}, v{r} {mod} row_mask:0xf bank_mask:0xf")
    for sw in ("v_permlane16_swap_b32", "v_permlane32_swap_b32"):
        E.e(f"v_mov_b32 v{t}, v{r}")
        E.e("s_nop 1")
        E.e(f"{sw} v{r}, v{t}")
        E.e("s_nop 0")
        E.e(f"v_max_u32 v{r}, v{r}, v{t}")

def gen_kf(name="kf_kernel"):
    E = Em()
    SG, SU, SD, SWS = 20, 24, 28, 32
    sW, sT, sT2, sL = 36, 37, 38, 39
    vLane, vL16, vT = 100, 101, 102
    E.e(f"s_cmp_ge_u32 s2, {NP}")
    E.e(f"s_cbranch_scc1 {name}_end")
    E.e("s_load_dwordx4 s[4:7], s[0:1], 64")
    E.e("s_load_dwordx2 s[8:9], s[0:1], 80")
    E.e("s_load_dwordx2 s[10:11], s[0:1], 104")
    E.e(f"v_and_b32 v{vLane}, 63, v0")
    E.e(f"v_lshrrev_b32 v{vT}, 6, v0")
    E.e(f"v_lshlrev_b32 v{vL16}, 4, v{vLane}")
    E.e(f"v_readfirstlane_b32 s{sW}, v{vT}")
    E.e("s_waitcnt lgkmcnt(0)")
    srd(E, SG, 4, 512 * 2752); srd(E, SU, 6, 512 * 2752); srd(E, SD, 8, 1376 * 1024); srd(E, SWS, 10, WS_SIZE)
    K = 0
    E.e(f"s_lshl_b32 s{sT}, s{sW}, 11")
    E.e(f"s_add_u32 s{sT}, s{sT}, {hex(WS_RS)}")
    E.vmem(f"buffer_load_dwordx4 {v4(K)}, v{vL16}, {s4(SWS)}, s{sT} offen", "key")
    E.vmem(f"buffer_load_dwordx4 {v4(K+4)}, v{vL16}, {s4(SWS)}, s{sT} offen offset:1024", "key")
    E.e(f"s_mul_i32 s{sL}, s{sW}, 24576")
    E.e(f"v_lshrrev_b32 v{vT}, 2, v{vLane}")
    E.e(f"v_mul_u32_u24 v{vT}, 2752, v{vT}")
    E.e(f"v_and_b32 v{vT+1}, 3, v{vLane}")
    E.e(f"v_lshl_add_u32 v{vT}, v{vT+1}, 4, v{vT}")
    E.e(f"s_mul_i32 s{sT}, s{sW}, {128*2752}")
    E.e(f"s_lshl_b32 s{sT2}, s2, 6")
    E.e(f"s_add_u32 s{sT}, s{sT}, s{sT2}")
    for mat, S in enumerate((SG, SU)):
        for i in range(8):
            E.e(f"s_add_u32 m0, s{sL}, {mat*8192 + i*1024}")
            E.e(f"s_add_u32 s{sT2}, s{sT}, {i*16*2752}")
            E.vmem(f"buffer_load_dwordx4 v{vT}, {s4(S)}, s{sT2} offen lds", "w")
    E.e(f"v_lshrrev_b32 v{vT}, 4, v{vLane}")
    E.e(f"v_lshlrev_b32 v{vT}, 10, v{vT}")
    E.e(f"v_and_b32 v{vT+1}, 15, v{vLane}")
    E.e(f"v_lshl_add_u32 v{vT}, v{vT+1}, 4, v{vT}")
    E.e(f"s_lshl_b32 s{sT}, s2, 15")
    E.e(f"s_lshl_b32 s{sT2}, s{sW}, 8")
    E.e(f"s_add_u32 s{sT}, s{sT}, s{sT2}")
    for i in range(8):
        E.e(f"s_add_u32 m0, s{sL}, {16384 + i*1024}")
        E.e(f"s_add_u32 s{sT2}, s{sT}, {i*4096}")
        E.vmem(f"buffer_load_dwordx4 v{vT}, {s4(SD)}, s{sT2} offen lds", "w")
    E.wait_vm("key")
    M, TT, C, PREV = 8, 9, 10, 11
    D = 12
    E.e(f"v_mov_b32 v{PREV}, 0")
    E.e(f"v_mov_b32 v{C}, 0")
    for rnd in range(8):
        for k in range(8): E.e(f"v_sub_u32 v{D+k}, v{K+k}, v{PREV}")
        E.e(f"v_max3_u32 v{M}, v{D}, v{D+1}, v{D+2}")
        E.e(f"v_max3_u32 v{M}, v{M}, v{D+3}, v{D+4}")
        E.e(f"v_max3_u32 v{M}, v{M}, v{D+5}, v{D+6}")
        E.e(f"v_max_u32 v{M}, v{M}, v{D+7}")
        wave_max_u32(E, M, TT)
        E.e(f"v_add_u32 v{PREV}, v{PREV}, v{M}")
        E.e(f"v_cmp_eq_u32 vcc, {rnd}, v{vLane}")
        E.e("s_nop 1")
        E.e(f"v_cndmask_b32 v{C}, v{C}, v{PREV}, vcc")
    LC = 98304
    E.e(f"s_lshl_b32 s{sT}, s{sW}, 5")
    E.e(f"v_lshl_add_u32 v{vT}, v{vLane}, 2, s{sT}")
    E.e(f"v_add_u32 v{vT}, {LC}, v{vT}")
    E.e("s_mov_b64 exec, 0xff")
    E.e(f"ds_write_b32 v{vT}, v{C}")
    E.e("s_mov_b64 exec, -1")
    E.e("s_waitcnt lgkmcnt(0)")
    E.e("s_barrier")
    E.e(f"v_and_b32 v{vT}, 31, v{vLane}")
    E.e(f"v_lshlrev_b32 v{vT}, 2, v{vT}")
    E.e(f"v_add_u32 v{vT}, {LC}, v{vT}")
    E.e(f"ds_read_b32 v{C}, v{vT}")
    E.e(f"v_mov_b32 v{M}, 0")
    E.e("s_waitcnt lgkmcnt(0)")
    for k in range(32):
        E.e(f"v_readlane_b32 s{sT}, v{C}, {k}")
        E.e("s_nop 1")
        E.e(f"v_cmp_gt_u32 vcc, s{sT}, v{C}")
        E.e("s_nop 1")
        E.e(f"v_addc_co_u32 v{M}, vcc, 0, v{M}, vcc")
    E.e(f"s_lshl_b32 s{sT}, s{sW}, 5")
    E.e(f"s_add_u32 s{sT}, s{sT}, {LC + 128}")
    E.e(f"v_lshl_add_u32 v{vT}, v{M}, 2, s{sT}")
    E.e(f"v_cmp_gt_u32 vcc, 8, v{M}")
    E.e("s_and_saveexec_b64 s[40:41], vcc")
    E.e(f"ds_write_b32 v{vT}, v{C}")
    E.e("s_mov_b64 exec, s[40:41]")
    E.e(f"v_and_b32 v{vT}, 7, v{vLane}")
    E.e(f"v_lshl_add_u32 v{vT}, v{vT}, 2, s{sT}")
    E.e("s_waitcnt lgkmcnt(0)")
    E.e(f"ds_read_b32 v{C}, v{vT}")
    E.e("s_waitcnt lgkmcnt(0)")
    E.e(f"s_or_b32 s{sT}, s2, s{sW}")
    E.e(f"s_cmp_lg_u32 s{sT}, 0")
    E.e(f"s_cbranch_scc1 {name}_nopub")
    E.e(f"v_lshlrev_b32 v{vT}, 2, v{vLane}")
    E.e(f"s_mov_b32 s{sT}, {hex(WS_IDX)}")
    E.e("s_mov_b64 exec, 0xff")
    E.e(f"buffer_store_dword v{C}, v{vT}, {s4(SWS)}, s{sT} offen")
    E.e("s_mov_b64 exec, -1")
    E.e(f"{name}_nopub:")
    E.e(f"v_and_b32 v{M}, 0xffff, v{C}")
    E.e(f"v_sub_u32 v{M}, 2047, v{M}")
    E.e(f"v_lshrrev_b32 v{vT}, 6, v{M}")
    E.e(f"v_lshlrev_b32 v{vT}, 16, v{vT}")
    E.e(f"v_bfe_u32 v{vT+1}, v{M}, 4, 2")
    E.e(f"v_lshl_add_u32 v{vT}, v{vT+1}, 10, v{vT}")
    E.e(f"v_and_b32 v{vT+1}, 15, v{M}")
    E.e(f"v_lshl_add_u32 v{vT}, v{vT+1}, 4, v{vT}")
    E.e(f"v_lshrrev_b32 v{vT+1}, 4, v{vLane}")
    E.e(f"v_lshl_add_u32 v{vT}, v{vT+1}, 8, v{vT}")
    XB = 20
    E.e(f"s_lshl_b32 s{sT}, s{sW}, 14")
    for k in range(4):
        E.e(f"s_add_u32 s{sT2}, s{sT}, {k*4096}")
        E.e(f"buffer_load_dwordx4 {v4(XB+4*k)}, v{vT}, {s4(SWS)}, s{sT2} offen")
    E.e(f"v_lshrrev_b32 v{vT}, 4, v{vLane}")
    E.e(f"v_bfe_u32 v{vT+1}, v{vLane}, 2, 2")
    E.e(f"v_lshl_add_u32 v{vT}, v{vT}, 3, v{vT+1}")
    E.e(f"v_lshlrev_b32 v{vT}, 6, v{vT}")
    E.e(f"v_and_b32 v{vT+1}, 3, v{vLane}")
    E.e(f"v_lshl_add_u32 v{vT}, v{vT+1}, 3, v{vT}")
    E.e(f"v_add_u32 v{vT}, s{sL}, v{vT}")
    E.e("s_waitcnt vmcnt(0)")
    AF = 36
    ACC = 52
    for k in range(4):
        for mat in range(2):
            for ft in range(2):
                r = AF + (mat * 2 + ft) * 4
                o = mat * 8192 + k * 2048 + ft * 32
                E.e(f"ds_read_b64_tr_b16 {v2(r)}, v{vT} offset:{o}")
                E.e(f"ds_read_b64_tr_b16 {v2(r+2)}, v{vT} offset:{o+256}")
        E.e("s_waitcnt lgkmcnt(0)")
        for q in range(4):
            a = v4(ACC + 4 * q)
            E.e(f"{MFMA} {a}, {v4(AF+4*q)}, {v4(XB+4*k)}, {'0' if k == 0 else a}")
    E.e("s_nop 7")
    LR = 99328
    E.e(f"s_lshl_b32 s{sT}, s{sW}, 12")
    E.e(f"s_add_u32 s{sT}, s{sT}, {LR}")
    E.e(f"v_add_u32 v{vT+1}, s{sT}, v{vL16}")
    for q in range(4): E.e(f"ds_write_b128 v{vT+1}, {v4(ACC+4*q)} offset:{q*1024}")
    E.e("s_waitcnt lgkmcnt(0)")
    E.e("s_barrier")
    E.e(f"v_add_u32 v{vT+1}, {LR}, v{vL16}")
    R = 0
    for w in range(4):
        for q in range(4): E.e(f"ds_read_b128 {v4(R + (w*4+q)*4)}, v{vT+1} offset:{w*4096 + q*1024}")
        if w == 1: E.e("s_waitcnt lgkmcnt(0)")
    E.e("s_waitcnt lgkmcnt(0)")
    for w in range(1, 4):
        for k in range(16): E.e(f"v_add_f32 v{k}, v{k}, v{w*16+k}")
    for k in range(8): E.e(f"v_cvt_pk_bf16_f32 v{16+k}, v{k}, v{8+k}")
    for k in range(8):
        E.e(f"v_lshlrev_b32 v{k}, 16, v{16+k}")
        E.e(f"v_and_b32 v{8+k}, 0xffff0000, v{16+k}")
    for k in range(8): E.e(f"v_mul_f32 v{16+k}, 0xbfb8aa3b, v{k}")
    for k in range(8): E.e(f"v_exp_f32 v{16+k}, v{16+k}")
    for k in range(8): E.e(f"v_add_f32 v{16+k}, 1.0, v{16+k}")
    for k in range(8): E.e(f"v_rcp_f32 v{16+k}, v{16+k}")
    for k in range(8): E.e(f"v_mul_f32 v{k}, v{k}, v{16+k}")
    for k in range(4): E.e(f"v_cvt_pk_bf16_f32 v{16+k}, v{2*k}, v{2*k+1}")
    for k in range(4):
        E.e(f"v_lshlrev_b32 v{2*k}, 16, v{16+k}")
        E.e(f"v_and_b32 v{2*k+1}, 0xffff0000, v{16+k}")
    for k in range(8): E.e(f"v_mul_f32 v{k}, v{k}, v{8+k}")
    HB = 16
    for k in range(4): E.e(f"v_cvt_pk_bf16_f32 v{HB+k}, v{2*k}, v{2*k+1}")
    E.e(f"v_lshrrev_b32 v{vT}, 2, v{vLane}")
    E.e(f"v_lshlrev_b32 v{vT}, 8, v{vT}")
    E.e(f"v_and_b32 v{vT+1}, 3, v{vLane}")
    E.e(f"v_lshl_add_u32 v{vT}, v{vT+1}, 3, v{vT}")
    E.e(f"v_add_u32 v{vT}, s{sL}, v{vT}")
    DF = 20
    for mt in range(8):
        E.e(f"ds_read_b64_tr_b16 {v2(DF+4*mt)}, v{vT} offset:{16384 + mt*32}")
        E.e(f"ds_read_b64_tr_b16 {v2(DF+4*mt+2)}, v{vT} offset:{16384 + mt*32 + 4096}")
        if mt == 3: E.e("s_waitcnt lgkmcnt(0)")
    E.e("s_waitcnt lgkmcnt(0)")
    Y = 52
    for mt in range(8): E.e(f"{MFMA} {v4(Y+4*mt)}, {v4(DF+4*mt)}, {v4(HB)}, 0")
    E.e(f"v_and_b32 v{vT}, 15, v{vLane}")
    E.e(f"v_cmp_gt_u32 vcc, 8, v{vT}")
    E.e(f"v_lshlrev_b32 v{vT}, 11, v{vT}")
    E.e(f"v_lshrrev_b32 v{vT+1}, 4, v{vLane}")
    E.e(f"v_lshl_add_u32 v{vT}, v{vT+1}, 4, v{vT}")
    E.e(f"s_lshl_b32 s{sT}, s2, 14")
    E.e(f"s_lshl_b32 s{sT2}, s{sW}, 9")
    E.e(f"s_add_u32 s{sT}, s{sT}, s{sT2}")
    E.e(f"s_add_u32 s{sT}, s{sT}, {hex(WS_YP)}")
    E.e("s_and_saveexec_b64 s[40:41], vcc")
    for mt in range(8): E.e(f"buffer_store_dwordx4 {v4(Y+4*mt)}, v{vT}, {s4(SWS)}, s{sT} offen offset:{mt*64}")
    E.e(f"{name}_end:")
    E.e("s_endpgm")
    for p in check(E.L, name): print("HAZARD", p)
    return head(name) + E.text(), kd(name, 112, 112, 96)

if __name__ == "__main__":
    t, k = gen_kf()
    print(len(t.splitlines()))
```

```python
import sys
from common import *
from k1 import gen_k1
from k2 import gen_k2
from k3 import gen_k3
from kf import gen_kf

NAME = "parallel_sum__compressed_kv_cla__moe_arch_mod__prompt"
def build(out, **kw):
    ref = open(f"cdna_kernels/{NAME}.s.ref").read().splitlines()
    hdr = [l for l in ref if l.startswith(";") and "@launch" not in l and "Override launch" not in l and "grid=ceil" not in l]
    hdr = hdr[:15]
    ks = [gen_k1(stflag=kw.get("st1", "")), gen_kf(), gen_k2(stflag=kw.get("st2", "")), gen_k3()]
    L = "\n".join(hdr) + "\n"
    L += "; @launch kernel=k1_kernel grid=(256,1,1) block=(256,1,1) lds=163840\n"
    L += f"; @launch kernel=kf_kernel grid=({NP},1,1) block=(256,1,1) lds=131072\n"
    L += "; @launch kernel=k2_kernel grid=(256,1,1) block=(256,1,1) lds=163840\n"
    L += "; @launch kernel=k3_kernel grid=(256,1,1) block=(512,1,1) lds=139264\n"
    L += '.amdgcn_target "amdgcn-amd-amdhsa--gfx950"\n'
    for t, k in ks: L += t
    for t, k in ks: L += k
    open(out, "w").write(L)
if __name__ == "__main__":
    build(sys.argv[1] if len(sys.argv) > 1 else f"cdna_kernels/{NAME}.s")
```

```python
from asmlib import *

WS_XN   = 0x0000000
WS_RS   = 0x0200000
WS_IDX  = 0x0208000
WS_UPD  = 0x0210000
WS_YP   = 0x0220000
NP      = 43
WS_WOF  = 0x0400000
WS_K    = 0x1000000
WS_V    = 0x2000000
WS_CTX  = 0x3000000
WS_SIZE = 0x10000000

import struct, math
SCALE_BITS = struct.unpack("<I", struct.pack("<f", math.log2(math.e) / math.sqrt(128.0)))[0]

class Stream:
    def __init__(self, W, lead, age=10, maxper=1):
        self.W = W; self.lead = lead; self.age = age; self.maxper = maxper
        self.reads = []
        self.latest = {}
    def read(self, tag, texts, first_use, earliest=-10**9, lead=None, latest=10**9):
        self.reads.append((tag, texts, first_use, earliest, lead if lead is not None else self.lead))
        self.latest[tag] = latest
    def place(self, E, load=None):
        W = self.W
        n = len(W.bb)
        cnt = [0] * n
        cur = -10**9
        issue = {}
        for tag, texts, fu, ea, lead in self.reads:
            for k, tx in enumerate(texts):
                s = max(fu - lead + k, ea, cur)
                if s >= 0:
                    while cnt[s] >= self.maxper and s < fu - 3: s += 1
                    assert s < fu, (tag, s, fu)
                    cnt[s] += 1
                    W.add(s, (lambda tx, tag: (lambda E: E.lds(tx, tag)))(tx, tag))
                else:
                    E.lds(tx, tag)
                cur = s
                issue[tag] = s
                assert s < self.latest[tag], (tag, s, self.latest[tag])
        order = [r[0] for r in self.reads]
        covered = set()
        for idx, (tag, texts, fu, ea, lead) in sorted(enumerate(self.reads), key=lambda x: (x[1][2], x[0])):
            if tag in covered: continue
            last = idx
            for k in range(idx + 1, len(order)):
                if issue[order[k]] <= fu - self.age: last = k
                else: break
            for k in range(0, last + 1): covered.add(order[k])
            W.pre(fu, (lambda t: (lambda E: E.wait_lg(t)))(order[last]))

def wave_sum2(E, regs, tmp):
    for mod in ("quad_perm:[1,0,3,2]", "quad_perm:[2,3,0,1]", "row_half_mirror", "row_mirror"):
        if len(regs) < 3: E.e(f"s_nop {2 - len(regs)}" if len(regs) < 3 else "")
        for r in regs:
            E.e(f"v_add_f32_dpp v{r}, v{r}, v{r} {mod} row_mask:0xf bank_mask:0xf")
    for sw in ("v_permlane16_swap_b32", "v_permlane32_swap_b32"):
        for r, t in zip(regs, tmp):
            E.e(f"v_mov_b32 v{t}, v{r}")
        E.e("s_nop 1")
        for r, t in zip(regs, tmp):
            E.e(f"{sw} v{r}, v{t}")
        E.e("s_nop 0")
        for r, t in zip(regs, tmp):
            E.e(f"v_add_f32 v{r}, v{r}, v{t}")

def head(name):
    return f".text\n.globl {name}\n.p2align 8\n.type {name},@function\n{name}:\n"

WS_PROF = 0x8000000
PROF = {"on": False}
def stamp(E, i):
    if not PROF["on"]: return
    E.e(f"{PROF.get('op', 's_memrealtime')} s[{64+2*i}:{65+2*i}]")
    E.e("s_waitcnt lgkmcnt(0)"); E.lg = []
def stamp_init(E):
    if not PROF["on"]: return
    for i in range(64, 96): E.e(f"s_mov_b32 s{i}, 0")
    stamp(E, 0)
def stamp_flush(E, kid, nw, SWS, sW, vtmp):
    if not PROF["on"]: return
    stamp(E, 15)
    E.e("s_nop 7")
    E.e("s_nop 7")
    for i in range(16): E.e(f"v_mov_b32 v{vtmp+i}, s{64+2*i}")
    E.e(f"v_mov_b32 v{vtmp+16}, 0")
    E.e(f"s_mul_i32 s64, s2, {nw}")
    E.e(f"s_add_u32 s64, s64, s{sW}")
    E.e(f"s_lshl_b32 s64, s64, 6")
    E.e(f"s_add_u32 s64, s64, {hex(WS_PROF + kid * 0x40000)}")
    E.e("s_mov_b64 exec, 1")
    for q in range(4): E.e(f"buffer_store_dwordx4 {v4(vtmp+4*q)}, v{vtmp+16}, {s4(SWS)}, s64 offen offset:{q*16}")
```

```python
from common import *

def gen_k1(name="k1_kernel", stflag=""):
    E = Em()
    SX, SCK, SWK, SWV, SWO, SWR, SWS = 20, 24, 28, 32, 36, 40, 44
    sW, sH, sRT = 48, 49, 50
    sCK0, sWo, sM, sT, sT2, sKst, sVst = 51, 52, 53, 54, 55, 56, 57
    sCKl, sWl, sUl = 58, 59, 60
    sWv = 61
    sSc = 63
    ACC1, ACC2, WF = 0, 128, 192
    vW = 224
    vA0, vA1 = 236, 237
    vCK = 238
    vWD = 242
    vL16, vLane = 246, 247
    vT = 248
    NWF = 8
    KT = lambda c, a: ACC1 + (c * 4 + a) * 4
    CF = lambda a, kb: (kb * 4 + a) * 4
    L_W = lambda slot: slot * 16384
    L_SP = 49152
    L_CK = 65536

    E.e("s_cmp_ge_u32 s2, 256")
    E.e(f"s_cbranch_scc1 {name}_end")
    stamp_init(E)
    E.e("s_load_dwordx4 s[4:7], s[0:1], 0")
    E.e("s_load_dwordx4 s[8:11], s[0:1], 16")
    E.e("s_load_dwordx4 s[12:15], s[0:1], 32")
    E.e("s_load_dwordx2 s[16:17], s[0:1], 56")
    E.e("s_load_dwordx2 s[18:19], s[0:1], 104")
    E.e(f"v_and_b32 v{vLane}, 63, v0")
    E.e(f"v_lshrrev_b32 v{vT}, 6, v0")
    E.e(f"v_lshlrev_b32 v{vL16}, 4, v{vLane}")
    E.e(f"v_readfirstlane_b32 s{sW}, v{vT}")
    E.e(f"s_and_b32 s{sT}, s2, 7")
    E.e(f"s_lshr_b32 s{sT2}, s2, 3")
    E.e(f"s_and_b32 s{sRT}, s{sT2}, 7")
    E.e(f"s_lshr_b32 s{sT2}, s{sT2}, 3")
    E.e(f"s_lshl_b32 s{sH}, s{sT}, 2")
    E.e(f"s_add_u32 s{sH}, s{sH}, s{sT2}")
    E.e(f"v_lshrrev_b32 v{vT}, 3, v{vLane}")
    E.e(f"v_lshlrev_b32 v{vT}, 10, v{vT}")
    E.e(f"v_and_b32 v{vT+1}, 7, v{vLane}")
    E.e(f"v_lshrrev_b32 v{vT+2}, 4, v{vLane}")
    E.e(f"v_xor_b32 v{vT+1}, v{vT+1}, v{vT+2}")
    E.e(f"v_lshl_add_u32 v{vCK}, v{vT+1}, 4, v{vT}")
    E.e(f"v_xor_b32 v{vT+3}, 64, v{vCK}")
    E.e(f"v_add_u32 v{vCK+1}, {7*1024}, v{vT+3}")
    E.e(f"v_add_u32 v{vCK+2}, {14*1024}, v{vCK}")
    E.e(f"v_add_u32 v{vCK+3}, {21*1024}, v{vT+3}")
    E.e(f"v_bfe_u32 v{vT}, v{vLane}, 1, 3")
    E.e(f"v_xor_b32 v{vT}, v{vT}, v{vT+2}")
    E.e(f"v_lshlrev_b32 v{vT}, 5, v{vT}")
    E.e(f"v_and_b32 v{vT+1}, 1, v{vLane}")
    E.e(f"v_lshl_add_u32 v{vT}, v{vT+1}, 4, v{vT}")
    E.e(f"v_lshl_add_u32 v{vWD}, v{vT+2}, 13, v{vT}")
    E.e(f"v_add_u32 v{vWD+1}, {32768-1024}, v{vWD}")
    E.e(f"v_xor_b32 v{vT+3}, 128, v{vWD}")
    E.e(f"v_add_u32 v{vWD+2}, {2*(32768-1024)}, v{vT+3}")
    E.e(f"v_add_u32 v{vWD+3}, {3*(32768-1024)}, v{vT+3}")
    E.e(f"v_bfe_u32 v{vT}, v{vLane}, 2, 2")
    E.e(f"v_lshl_add_u32 v{vT+1}, v{vT+2}, 3, v{vT}")
    E.e(f"v_lshlrev_b32 v{vT+1}, 8, v{vT+1}")
    E.e(f"v_and_b32 v{vT+3}, 3, v{vLane}")
    E.e(f"v_lshl_add_u32 v{vT+1}, v{vT+3}, 3, v{vT+1}")
    E.e(f"v_and_b32 v{vT+3}, 1, v{vT+2}")
    E.e(f"v_lshl_add_u32 v{vT}, v{vT+3}, 2, v{vT}")
    E.e(f"v_lshl_add_u32 v{vW}, v{vT}, 5, v{vT+1}")
    for c in range(1, 8):
        E.e(f"v_xor_b32 v{vW+c}, {c*32}, v{vW}")
    E.e(f"v_and_b32 v{vT}, 15, v{vLane}")
    E.e(f"v_lshrrev_b32 v{vT+1}, 1, v{vT}")
    E.e(f"v_xor_b32 v{vT+1}, v{vT+1}, v{vT+2}")
    E.e(f"v_lshlrev_b32 v{vT+1}, 4, v{vT+1}")
    E.e(f"v_lshl_add_u32 v{vA0}, v{vT}, 7, v{vT+1}")
    E.e(f"s_mul_i32 s{sCKl}, s{sW}, 24576")
    E.e(f"s_add_u32 s{sCKl}, s{sCKl}, {L_CK}")
    E.e(f"v_add_u32 v{vA0}, s{sCKl}, v{vA0}")
    E.e(f"v_xor_b32 v{vA1}, 64, v{vA0}")
    E.e(f"s_lshl_b32 s{sWl}, s{sW}, 12")
    E.e(f"s_and_b32 s{sUl}, s{sW}, 1")
    E.e(f"s_lshl_b32 s{sUl}, s{sUl}, 12")
    E.e(f"s_lshl_b32 s{sCK0}, s{sRT}, 18")
    E.e(f"s_lshl_b32 s{sT}, s{sW}, 16")
    E.e(f"s_add_u32 s{sCK0}, s{sCK0}, s{sT}")
    E.e(f"s_lshl_b32 s{sWo}, s{sW}, 17")
    E.e(f"s_lshl_b32 s{sT}, s{sH}, 8")
    E.e(f"s_add_u32 s{sWo}, s{sWo}, s{sT}")
    E.e(f"s_lshl_b32 s{sKst}, s{sH}, 19")
    E.e(f"s_lshl_b32 s{sT}, s{sRT}, 16")
    E.e(f"s_add_u32 s{sKst}, s{sKst}, s{sT}")
    E.e(f"s_lshl_b32 s{sT}, s{sW}, 14")
    E.e(f"s_add_u32 s{sKst}, s{sKst}, s{sT}")
    E.e(f"s_add_u32 s{sVst}, s{sKst}, {hex(WS_V)}")
    E.e(f"s_add_u32 s{sKst}, s{sKst}, {hex(WS_K)}")
    E.e(f"s_mov_b32 s{sSc}, {hex(SCALE_BITS)}")
    E.e("s_waitcnt lgkmcnt(0)")
    srd(E, SX, 4, 0x200000); srd(E, SCK, 6, 0x200000); srd(E, SWK, 10, 0x400000); srd(E, SWV, 12, 0x400000)
    srd(E, SWO, 14, 0x400000); srd(E, SWR, 16, 1024); srd(E, SWS, 18, WS_SIZE)

    def dma_ck(j):
        ops = []
        slot = j % 3
        for grp in range(2):
            def setup(E, grp=grp):
                E.e(f"s_add_u32 m0, s{sCKl}, {slot*8192 + grp*4096}")
                E.e(f"s_add_u32 s{sT}, s{sCK0}, {grp*32768 + j*128}")
            for i in range(4):
                def op(E, i=i, first=(i == 0), setup=setup):
                    if first: setup(E)
                    E.vmem(f"buffer_load_dwordx4 v{vCK+i}, {s4(SCK)}, s{sT} offen offset:{i*1024} lds", f"c{j}")
                ops.append(op)
        return ops
    def dma_w(j):
        ops = []
        for i in range(4):
            def op(E, i=i):
                if i == 0:
                    E.e(f"s_add_u32 m0, s{sWl}, {L_W(j % 3)}")
                    E.e(f"s_add_u32 s{sT2}, s{sWo}, {j*64*8192}")
                E.vmem(f"buffer_load_dwordx4 v{vWD+i}, {s4(SWK)}, s{sT2} offen offset:{i*1024} lds", f"c{j}")
            ops.append(op)
        return ops
    ULOC = {0: L_SP, 1: L_SP + 8192, 2: L_W(2), 3: L_W(2) + 8192, 8: L_W(0), 9: L_W(0) + 8192, 14: L_W(1), 15: L_W(1) + 8192}
    for w in range(4):
        ULOC[4 + w] = L_CK + w * 24576 + 16384
        ULOC[10 + w] = L_CK + w * 24576
    def dma_u(pair):
        ops = []
        for i in range(4):
            def op(E, i=i):
                if i == 0:
                    E.e(f"s_cmp_lt_u32 s{sW}, 2")
                    E.e(f"s_cselect_b32 s{sT2}, {ULOC[2*pair]}, {ULOC[2*pair+1]}") if False else None
                    E.e(f"s_mov_b32 s{sT2}, {ULOC[2*pair+1]}")
                    E.e(f"s_cselect_b32 s{sT2}, {ULOC[2*pair]}, s{sT2}")
                    E.e(f"s_add_u32 m0, s{sT2}, s{sUl}")
                    E.e(f"s_add_u32 s{sT2}, s{sWo}, {pair*64*8192}")
                E.vmem(f"buffer_load_dwordx4 v{vWD+i}, {s4(SWV)}, s{sT2} offen offset:{i*1024} lds", f"u{pair}")
            ops.append(op)
        return ops

    X0, X1, WR = 128, 132, 136
    E.e(f"s_lshl_b32 s{sT}, s2, 13")
    E.e(f"s_lshl_b32 s{sT2}, s{sW}, 11")
    E.e(f"s_add_u32 s{sT}, s{sT}, s{sT2}")
    E.vmem(f"buffer_load_dwordx4 {v4(X0)}, v{vL16}, {s4(SX)}, s{sT} offen", "ln")
    E.vmem(f"buffer_load_dwordx4 {v4(X1)}, v{vL16}, {s4(SX)}, s{sT} offen offset:1024", "ln")
    E.vmem(f"buffer_load_dwordx4 {v4(WR)}, v{vL16}, {s4(SWR)}, 0 offen", "ln")
    for op in dma_w(0) + dma_ck(0) + dma_w(1) + dma_ck(1): op(E)
    E.e(f"v_lshrrev_b32 v{vT}, 3, v{vLane}")
    E.e(f"v_lshlrev_b32 v{vT}, 10, v{vT}")
    E.e(f"v_and_b32 v{vT+1}, 7, v{vLane}")
    E.e(f"v_lshl_add_u32 v{vT+4}, v{vT+1}, 4, v{vT}")
    E.e(f"s_lshr_b32 s{sT}, s2, 1")
    E.e(f"s_lshl_b32 s{sT}, s{sT}, 15")
    E.e(f"s_and_b32 s{sM}, s2, 1")
    E.e(f"s_lshl_b32 s{sM}, s{sM}, 2")
    E.e(f"s_add_u32 s{sM}, s{sM}, s{sW}")
    E.e(f"s_lshl_b32 s{sT2}, s{sM}, 7")
    E.e(f"s_add_u32 s{sT}, s{sT}, s{sT2}")
    for i in range(4):
        E.e(f"s_add_u32 m0, s{sWl}, {L_SP + i*1024}")
        E.e(f"s_add_u32 s{sT2}, s{sT}, {i*8192}")
        E.vmem(f"buffer_load_dwordx4 v{vT+4}, {s4(SWO)}, s{sT2} offen lds", "wo")
    for op in dma_w(2) + dma_ck(2): op(E)

    stamp(E, 1)
    E.wait_vm("ln")
    stamp(E, 2)
    F = [140, 148]
    Sm = [156, 157]; Tm = [158, 159]; D = [160, 168]
    WRF = 176
    for rr, X in enumerate((X0, X1)):
        for k in range(4):
            E.e(f"v_lshlrev_b32 v{F[rr]+2*k}, 16, v{X+k}")
            E.e(f"v_and_b32 v{F[rr]+2*k+1}, 0xffff0000, v{X+k}")
    for k in range(4):
        E.e(f"v_lshlrev_b32 v{WRF+2*k}, 16, v{WR+k}")
        E.e(f"v_and_b32 v{WRF+2*k+1}, 0xffff0000, v{WR+k}")
    for rr in range(2):
        E.e(f"v_add_f32 v{Sm[rr]}, v{F[rr]}, v{F[rr]+1}")
    for k in range(2, 8):
        for rr in range(2):
            E.e(f"v_add_f32 v{Sm[rr]}, v{Sm[rr]}, v{F[rr]+k}")
    wave_sum2(E, Sm, Tm)
    MEAN = [184, 185]; MB = [186, 187]
    for rr in range(2):
        E.e(f"v_mul_f32 v{MEAN[rr]}, 0x3b000000, v{Sm[rr]}")
    for k in range(8):
        for rr in range(2):
            E.e(f"v_sub_f32 v{D[rr]+k}, v{F[rr]+k}, v{MEAN[rr]}")
    for rr in range(2):
        E.e(f"v_mul_f32 v{Sm[rr]}, v{D[rr]}, v{D[rr]}")
    for k in range(1, 8):
        for rr in range(2):
            E.e(f"v_fmac_f32 v{Sm[rr]}, v{D[rr]+k}, v{D[rr]+k}")
    wave_sum2(E, Sm, Tm)
    for rr in range(2):
        E.e(f"v_mul_f32 v{Sm[rr]}, 0x3b000000, v{Sm[rr]}")
    for rr in range(2):
        E.e(f"v_cvt_pk_bf16_f32 v{Tm[rr]}, v{Sm[rr]}, v{MEAN[rr]}")
    for rr in range(2):
        E.e(f"v_and_b32 v{MB[rr]}, 0xffff0000, v{Tm[rr]}")
        E.e(f"v_lshlrev_b32 v{Sm[rr]}, 16, v{Tm[rr]}")
    for rr in range(2):
        E.e(f"v_add_f32 v{Sm[rr]}, 0x3727c5ac, v{Sm[rr]}")
    for rr in range(2):
        E.e(f"v_cvt_pk_bf16_f32 v{Sm[rr]}, v{Sm[rr]}, v{Sm[rr]}")
    for rr in range(2):
        E.e(f"v_lshlrev_b32 v{Sm[rr]}, 16, v{Sm[rr]}")
    for rr in range(2):
        E.e(f"v_sqrt_f32 v{Sm[rr]}, v{Sm[rr]}")
    E.e("s_nop 0")
    for rr in range(2):
        E.e(f"v_cvt_pk_bf16_f32 v{Sm[rr]}, v{Sm[rr]}, v{Sm[rr]}")
    for rr in range(2):
        E.e(f"v_lshlrev_b32 v{Sm[rr]}, 16, v{Sm[rr]}")
    for rr in range(2):
        E.e(f"v_rcp_f32 v{Tm[rr]}, v{Sm[rr]}")
    for k in range(8):
        for rr in range(2):
            E.e(f"v_sub_f32 v{D[rr]+k}, v{F[rr]+k}, v{MB[rr]}")
    for k in range(4):
        for rr in range(2):
            E.e(f"v_cvt_pk_bf16_f32 v{F[rr]+k}, v{D[rr]+2*k}, v{D[rr]+2*k+1}")
    for k in range(4):
        for rr in range(2):
            E.e(f"v_lshlrev_b32 v{D[rr]+2*k}, 16, v{F[rr]+k}")
            E.e(f"v_and_b32 v{D[rr]+2*k+1}, 0xffff0000, v{F[rr]+k}")
    for k in range(8):
        for rr in range(2):
            E.e(f"v_mul_f32 v{F[rr]+k}, v{D[rr]+k}, v{Tm[rr]}")
    for k in range(8):
        for rr in range(2):
            E.e(f"v_fma_f32 v{D[rr]+k}, -v{F[rr]+k}, v{Sm[rr]}, v{D[rr]+k}")
    for k in range(8):
        for rr in range(2):
            E.e(f"v_fmac_f32 v{F[rr]+k}, v{D[rr]+k}, v{Tm[rr]}")
    for k in range(4):
        for rr, X in enumerate((X0, X1)):
            E.e(f"v_cvt_pk_bf16_f32 v{X+k}, v{F[rr]+2*k}, v{F[rr]+2*k+1}")
    E.e(f"v_lshrrev_b32 v{vT}, 2, v{vLane}")
    E.e(f"v_lshlrev_b32 v{vT}, 12, v{vT}")
    E.e(f"v_and_b32 v{vT+1}, 3, v{vLane}")
    E.e(f"v_lshl_add_u32 v{vT}, v{vT+1}, 8, v{vT}")
    E.e(f"s_lshr_b32 s{sT}, s2, 3")
    E.e(f"s_lshl_b32 s{sT}, s{sT}, 16")
    E.e(f"s_bfe_u32 s{sT2}, s2, 0x20001")
    E.e(f"s_lshl_b32 s{sT2}, s{sT2}, 10")
    E.e(f"s_add_u32 s{sT}, s{sT}, s{sT2}")
    E.e(f"s_and_b32 s{sT2}, s2, 1")
    E.e(f"s_lshl_b32 s{sT2}, s{sT2}, 7")
    E.e(f"s_add_u32 s{sT}, s{sT}, s{sT2}")
    E.e(f"s_lshl_b32 s{sT2}, s{sW}, 5")
    E.e(f"s_add_u32 s{sT}, s{sT}, s{sT2}")
    E.vmem(f"buffer_store_dwordx4 {v4(X0)}, v{vT}, {s4(SWS)}, s{sT} offen", "st")
    E.vmem(f"buffer_store_dwordx4 {v4(X1)}, v{vT}, {s4(SWS)}, s{sT} offen offset:16", "st")
    for k in range(4):
        for rr, X in enumerate((X0, X1)):
            E.e(f"v_lshlrev_b32 v{D[rr]+2*k}, 16, v{X+k}")
            E.e(f"v_and_b32 v{D[rr]+2*k+1}, 0xffff0000, v{X+k}")
    for rr in range(2):
        E.e(f"v_mul_f32 v{Sm[rr]}, v{D[rr]}, v{WRF}")
    for k in range(1, 8):
        for rr in range(2):
            E.e(f"v_fmac_f32 v{Sm[rr]}, v{D[rr]+k}, v{WRF+k}")
    wave_sum2(E, Sm, Tm)
    E.e(f"v_cvt_pk_bf16_f32 v{Tm[0]}, v{Sm[0]}, v{Sm[1]}")
    E.e(f"v_lshlrev_b32 v{MEAN[0]}, 16, v{Tm[0]}")
    E.e(f"v_and_b32 v{MEAN[1]}, 0xffff0000, v{Tm[0]}")
    E.e(f"s_lshl_b32 s{sT}, s2, 3")
    E.e(f"s_lshl_b32 s{sT2}, s{sW}, 1")
    E.e(f"s_add_u32 s{sT}, s{sT}, s{sT2}")
    E.e(f"s_sub_u32 s{sT}, 2047, s{sT}")
    E.e(f"s_sub_u32 s{sT2}, s{sT}, 1")
    for rr in range(2):
        E.e(f"v_add_f32 v{MEAN[rr]}, 0, v{MEAN[rr]}")
    for rr in range(2):
        E.e(f"v_ashrrev_i32 v{Sm[rr]}, 31, v{MEAN[rr]}")
    for rr in range(2):
        E.e(f"v_or_b32 v{Sm[rr]}, 0x80000000, v{Sm[rr]}")
    for rr in range(2):
        E.e(f"v_xor_b32 v{MEAN[rr]}, v{MEAN[rr]}, v{Sm[rr]}")
    for rr in range(2):
        E.e(f"v_and_b32 v{MEAN[rr]}, 0xffff0000, v{MEAN[rr]}")
    E.e(f"v_or_b32 v{MEAN[0]}, s{sT}, v{MEAN[0]}")
    E.e(f"v_or_b32 v{MEAN[1]}, s{sT2}, v{MEAN[1]}")
    E.e(f"s_lshl_b32 s{sT}, s2, 5")
    E.e(f"s_lshl_b32 s{sT2}, s{sW}, 3")
    E.e(f"s_add_u32 s{sT}, s{sT}, s{sT2}")
    E.e(f"s_add_u32 s{sT}, s{sT}, {hex(WS_RS)}")
    E.e(f"v_mov_b32 v{vT+1}, 0")
    E.e(f"s_mov_b64 exec, 1")
    E.vmem(f"buffer_store_dwordx2 {v2(MEAN[0])}, v{vT+1}, {s4(SWS)}, s{sT} offen", "st")
    E.e(f"s_mov_b64 exec, -1")

    stamp(E, 3)
    E.wait_vm("c0")
    E.e("s_barrier")
    stamp(E, 4)
    W = Weave()
    S = Stream(W, lead=20, age=10, maxper=1)
    fi = [0]
    def wfrag_read(base_reg, off, first_use, earliest, nuse=4, latest=10**9):
        r = WF + (fi[0] % NWF) * 4
        tag = f"wf{fi[0]}"
        ea = max(earliest, ring_last.get(fi[0] % NWF, -10**9))
        S.read(tag, [f"ds_read_b64_tr_b16 {v2(r)}, v{base_reg} offset:{off}", f"ds_read_b64_tr_b16 {v2(r+2)}, v{base_reg} offset:{off+1024}"], first_use, ea, latest=latest)
        ring_last[fi[0] % NWF] = first_use + nuse - 1
        fi[0] += 1
        return r
    ring_last = {}
    BARPOS = 48
    bar_slot = {}
    bar_slot[0] = -10**9
    for j in range(1, 8): bar_slot[j] = (j - 1) * 64 + BARPOS
    for j in range(8):
        for ks in range(2):
            kb = 2 * j + ks
            base = len(W.bb)
            for a in range(4):
                S.read(f"cf{kb}_{a}", [f"ds_read_b128 {a4(CF(a,kb))}, v{vA1 if ks else vA0} offset:{(j%3)*8192 + a*2048}"], base + a, bar_slot[j], lead=24, latest=j*64+BARPOS)
            for c in range(8):
                r = wfrag_read(vW + c, L_W(j % 3) + ks * 8192, base + 4 * c, bar_slot[j], latest=j*64+BARPOS)
                for a in range(4):
                    cin = "0" if kb == 0 else v4(KT(c, a))
                    W.mf(f"{MFMA} {v4(KT(c,a))}, {v4(r)}, {a4(CF(a,kb))}, {cin}")
    P1END = len(W.bb)
    VT = lambda a, c: ACC2 + (c * 4 + a) * 4
    def uaddr(u, cc):
        loc = ULOC[u]; win = loc // 65536
        return vW + win * 4 + cc, loc - win * 65536
    ubar = {}
    for u in range(16):
        ubar[u] = (7 * 64 + BARPOS) if u < 8 else (P1END + 5 * 16 if u < 14 else P1END + 11 * 16)
    ADDR2A = 7 * 64 + BARPOS
    for u in range(16):
        base = len(W.bb)
        for c in range(4):
            reg, off = uaddr(u, c)
            r = wfrag_read(reg, off, base + 4 * c, ubar[u], latest=P1END+256-22)
            for a in range(4):
                cin = "0" if u == 0 else v4(VT(a, c))
                W.mf(f"{MFMA} {v4(VT(a,c))}, {a4(CF(a,u))}, {v4(r)}, {cin}")
    P2AEND = len(W.bb)
    ADDR2B = P2AEND - 22
    VB = lambda a, c: ACC1 + ((c & 1) * 4 + a) * 4
    for c in range(4):
        for u in range(16):
            base = len(W.bb)
            reg, off = uaddr(u, c)
            r = wfrag_read(reg, off, base, ADDR2B + 1)
            for a in range(4):
                cin = "0" if u == 0 else v4(VB(a, c))
                W.mf(f"{MFMA} {v4(VB(a,c))}, {a4(CF(a,u))}, {v4(r)}, {cin}")
    NTOT = len(W.bb)

    def spread(ops, s0, s1):
        n = len(ops)
        for k, op in enumerate(ops):
            W.add(s0 + (k * (s1 - s0)) // n, op)
    def barrier_at(slot, vmtags):
        def f(E):
            E.wait_vm(*vmtags)
            E.e("s_waitcnt lgkmcnt(0)"); E.lg = []
            E.e("s_barrier")
        W.post[slot].insert(0, f)
    for j in range(8):
        bs = j * 64 + BARPOS
        if j < 7: barrier_at(bs, [f"c{j+1}"])
        else: barrier_at(bs, ["u0", "u1", "u2", "u3"])
        if j + 3 < 8:
            ops = dma_w(j + 3) + dma_ck(j + 3)
            if j == 2: ops = ops + dma_u(0)
        elif j == 5: ops = dma_u(1) + dma_u(2) + dma_u(3)
        elif j == 6: ops = dma_u(4) + dma_u(5) + dma_u(6)
        else: ops = dma_u(7)
        spread(ops, bs + 1, bs + 1 + 56)
    barrier_at(P1END + 5 * 16, ["u4", "u5", "u6"])
    barrier_at(P1END + 11 * 16, ["u7"])
    WOT = 176
    def wo_addr(E):
        E.e(f"v_lshrrev_b32 v{vT}, 2, v{vLane}")
        E.e(f"v_lshlrev_b32 v{vT}, 7, v{vT}")
        E.e(f"v_and_b32 v{vT+1}, 3, v{vLane}")
        E.e(f"v_lshl_add_u32 v{vT}, v{vT+1}, 3, v{vT}")
        E.e(f"v_add_u32 v{vT}, s{sWl}, v{vT}")
    W.add(2 * 64 - 10, wo_addr)
    for mm in range(4):
        W.add(2 * 64 + 2 * mm, (lambda mm: lambda E: E.lds(f"ds_read_b64_tr_b16 {v2(WOT+4*mm)}, v{vT} offset:{L_SP + mm*32}", "wot"))(mm))
        W.add(2 * 64 + 2 * mm + 1, (lambda mm: lambda E: E.lds(f"ds_read_b64_tr_b16 {v2(WOT+4*mm+2)}, v{vT} offset:{L_SP + mm*32 + 2048}", "wot"))(mm))
    def wo_st(E):
        E.wait_lg("wot")
        E.e(f"s_lshl_b32 s{sWv}, s{sM}, 19")
        E.e(f"s_lshr_b32 s{sWv+1}, s2, 1")
        E.e(f"s_lshl_b32 s{sWv+1}, s{sWv+1}, 12")
        E.e(f"s_add_u32 s{sWv}, s{sWv}, s{sWv+1}")
        E.e(f"s_add_u32 s{sWv}, s{sWv}, {hex(WS_WOF)}")
    W.add(2 * 64 + 24, wo_st)
    for mm in range(4):
        W.add(2 * 64 + 26 + 4 * mm, (lambda mm: lambda E: E.vmem(f"buffer_store_dwordx4 {v4(WOT+4*mm)}, v{vL16}, {s4(SWS)}, s{sWv} offen offset:{mm*1024}{stflag}", "st"))(mm))
    def addr2a(E):
        for cc in range(4):
            E.e(f"v_add_u32 v{vW+4+cc}, 0x10000, v{vW+cc}")
            E.e(f"v_add_u32 v{vW+8+cc}, 0x20000, v{vW+cc}")
    W.post[ADDR2A].insert(1, addr2a)
    def addr2b(E):
        for k in range(12):
            E.e(f"v_xor_b32 v{vW+k}, 128, v{vW+k}")
    W.add(ADDR2B, addr2b)
    def pack_store(src0, src1, sbase, idx, slot, scale=False):
        if scale:
            for q in range(4):
                W.add(slot + q, f"v_mul_f32 v{src0+q}, s{sSc}, v{src0+q}")
                W.add(slot + q, f"v_mul_f32 v{src1+q}, s{sSc}, v{src1+q}")
            slot += 4
        W.add(slot, f"v_cvt_pk_bf16_f32 v{src0}, v{src0}, v{src0+1}")
        W.add(slot, f"v_cvt_pk_bf16_f32 v{src0+1}, v{src0+2}, v{src0+3}")
        W.add(slot + 1, f"v_cvt_pk_bf16_f32 v{src0+2}, v{src1}, v{src1+1}")
        W.add(slot + 1, f"v_cvt_pk_bf16_f32 v{src0+3}, v{src1+2}, v{src1+3}")
        W.add(slot + 2, f"s_add_u32 s{sWv}, s{sbase}, {(idx>>2)*4096}")
        W.add(slot + 2, (lambda E: E.vmem(f"buffer_store_dwordx4 {v4(src0)}, v{vL16}, {s4(SWS)}, s{sWv} offen offset:{(idx&3)*1024}{stflag}", "st")))
    k = 0
    for t in range(4):
        for a in range(4):
            pack_store(KT(2 * t, a), KT(2 * t + 1, a), sKst, a * 4 + t, P1END + 10 + k * 14, scale=True)
            k += 1
    k = 0
    for c in range(4):
        for n in range(2):
            pack_store(VT(2 * n, c), VT(2 * n + 1, c), sVst, n * 8 + c, P2AEND + 10 + k * 7)
            k += 1
    for c in range(3):
        for n in range(2):
            pack_store(VB(2 * n, c), VB(2 * n + 1, c), sVst, n * 8 + 4 + c, P2AEND + (c + 1) * 64 + 10 + n * 12)
    for q, sl in enumerate((128, 256, 384, P1END, P2AEND)):
        W.pre(sl, (lambda q: lambda E: stamp(E, 5 + q))(q))
    S.place(E)
    W.emit(E)
    stamp(E, 10)
    E.e("s_nop 7")
    for n in range(2):
        s0, s1 = VB(2 * n, 3), VB(2 * n + 1, 3)
        E.e(f"v_cvt_pk_bf16_f32 v{s0}, v{s0}, v{s0+1}")
        E.e(f"v_cvt_pk_bf16_f32 v{s0+1}, v{s0+2}, v{s0+3}")
        E.e(f"v_cvt_pk_bf16_f32 v{s0+2}, v{s1}, v{s1+1}")
        E.e(f"v_cvt_pk_bf16_f32 v{s0+3}, v{s1+2}, v{s1+3}")
        idx = n * 8 + 7
        E.e(f"s_add_u32 s{sWv}, s{sVst}, {(idx>>2)*4096}")
        E.vmem(f"buffer_store_dwordx4 {v4(s0)}, v{vL16}, {s4(SWS)}, s{sWv} offen offset:{(idx&3)*1024}{stflag}", "st")
    if PROF["on"]:
        stamp(E, 11)
        E.e("s_waitcnt vmcnt(0)")
    stamp_flush(E, 0, 4, SWS, sW, 64)
    E.e(f"{name}_end:")
    E.e("s_endpgm")
    probs = check(E.L, name)
    for p in probs: print("HAZARD", p)
    return head(name) + E.text(), kd(name, 512, 256, 96)

if __name__ == "__main__":
    t, k = gen_k1()
    print(len(t.splitlines()))
```

```python
from common import *

BIGNEG = "0xf149f2ca"

def gen_k2(name="k2_kernel", stflag=""):
    E = Em()
    N = name
    SWQ, SWS, SKV = 20, 24, 28
    sW, sH, sP, sT, sT2 = 32, 33, 34, 35, 36
    sTgO = 37
    sSrc0, sSrc1, sRP = 38, 39, 40
    sCnt, sEv = 41, 42
    eSw, eP1, eP2, ePl, eDr = 43, 44, 45, 46, 47
    sDual, sSeg = 48, 49
    sXN, sWo, sWl = 50, 51, 52
    sTgA = 53
    sT3 = 54
    Sb = lambda par, a, b: ((par * 4 + b) * 2 + a) * 4
    Pb = lambda par, b: 64 + (par * 4 + b) * 4
    IN = lambda a, b: 96 + (a * 4 + b) * 4
    LS = lambda b: 128 + b * 4
    ONES = 144; NEGM = 148; DM = 152; NEGA = 156
    vRd, vL16, vLane, vMask, vG = 160, 161, 162, 163, 164
    vW = 166
    vWD = 174
    vT = 178
    QV = lambda b, t: 192 + (b * 4 + t) * 4
    WF = 128
    O = lambda c, b: (c * 4 + b) * 4
    QA = lambda b, t: 128 + (b * 4 + t) * 4
    KF = lambda i: 192 + 4 * i
    VF = lambda c: 224 + 4 * c
    XF = lambda kb, b: (kb * 4 + b) * 4
    QT = lambda c, b: (c * 4 + b) * 4
    L_WQ = 32768
    L_QX = 131072
    L_NM = 65536 + 49152

    E.e("s_cmp_ge_u32 s2, 256")
    E.e(f"s_cbranch_scc1 {N}_end")
    stamp_init(E)
    E.e("s_load_dwordx2 s[4:5], s[0:1], 16")
    E.e("s_load_dwordx2 s[6:7], s[0:1], 104")
    E.e(f"v_and_b32 v{vLane}, 63, v0")
    E.e(f"v_lshrrev_b32 v{vT}, 6, v0")
    E.e(f"v_lshlrev_b32 v{vL16}, 4, v{vLane}")
    E.e(f"v_readfirstlane_b32 s{sW}, v{vT}")
    E.e(f"s_and_b32 s{sT}, s2, 7")
    E.e(f"s_lshr_b32 s{sT2}, s2, 3")
    E.e(f"s_and_b32 s{sP}, s{sT2}, 7")
    E.e(f"s_lshr_b32 s{sT2}, s{sT2}, 3")
    E.e(f"s_lshl_b32 s{sH}, s{sT}, 2")
    E.e(f"s_add_u32 s{sH}, s{sH}, s{sT2}")
    E.e(f"v_lshrrev_b32 v{vT+2}, 4, v{vLane}")
    E.e(f"v_bfe_u32 v{vT}, v{vLane}, 1, 3")
    E.e(f"v_xor_b32 v{vT}, v{vT}, v{vT+2}")
    E.e(f"v_lshlrev_b32 v{vT}, 5, v{vT}")
    E.e(f"v_and_b32 v{vT+1}, 1, v{vLane}")
    E.e(f"v_lshl_add_u32 v{vT}, v{vT+1}, 4, v{vT}")
    E.e(f"v_lshl_add_u32 v{vWD}, v{vT+2}, 13, v{vT}")
    E.e(f"v_add_u32 v{vWD+1}, {32768-1024}, v{vWD}")
    E.e(f"v_xor_b32 v{vT+3}, 128, v{vWD}")
    E.e(f"v_add_u32 v{vWD+2}, {2*(32768-1024)}, v{vT+3}")
    E.e(f"v_add_u32 v{vWD+3}, {3*(32768-1024)}, v{vT+3}")
    E.e(f"v_bfe_u32 v{vT}, v{vLane}, 2, 2")
    E.e(f"v_lshl_add_u32 v{vT+1}, v{vT+2}, 3, v{vT}")
    E.e(f"v_lshlrev_b32 v{vT+1}, 8, v{vT+1}")
    E.e(f"v_and_b32 v{vT+3}, 3, v{vLane}")
    E.e(f"v_lshl_add_u32 v{vT+1}, v{vT+3}, 3, v{vT+1}")
    E.e(f"v_and_b32 v{vT+3}, 1, v{vT+2}")
    E.e(f"v_lshl_add_u32 v{vT}, v{vT+3}, 2, v{vT}")
    E.e(f"v_lshl_add_u32 v{vW}, v{vT}, 5, v{vT+1}")
    E.e(f"v_add_u32 v{vW}, {L_WQ}, v{vW}")
    for c in range(1, 8):
        E.e(f"v_xor_b32 v{vW+c}, {c*32}, v{vW}")
    E.e(f"s_lshl_b32 s{sT}, s{sP}, 1")
    E.e(f"s_sub_u32 s{sT2}, 30, s{sT}")
    E.e(f"s_add_u32 s{sT3}, s{sT2}, s{sW}")
    E.e(f"s_add_u32 s{sT}, s{sT}, s{sW}")
    E.e(f"s_sub_u32 s{sT}, s{sT}, 2")
    E.e(f"s_cmp_lt_u32 s{sW}, 2")
    E.e(f"s_cselect_b32 s{sT}, s{sT3}, s{sT}")
    E.e(f"s_lshl_b32 s{sXN}, s{sT}, 16")
    E.e(f"s_lshl_b32 s{sTgO}, s{sT}, 19")
    E.e(f"s_sub_u32 s{sT}, 3, s{sW}")
    E.e(f"s_min_u32 s{sT}, s{sT}, s{sW}")
    E.e(f"s_add_u32 s{sT}, s{sT}, s{sT2}")
    E.e(f"s_lshl_b32 s{sTgA}, s{sT}, 19")
    E.e(f"s_lshl_b32 s{sT}, s{sH}, 14")
    E.e(f"s_add_u32 s{sT}, s{sT}, {hex(WS_CTX)}")
    E.e(f"s_add_u32 s{sTgO}, s{sTgO}, s{sT}")
    E.e(f"s_add_u32 s{sTgA}, s{sTgA}, s{sT}")
    E.e(f"s_lshl_b32 s{sWl}, s{sW}, 12")
    E.e(f"s_lshl_b32 s{sWo}, s{sW}, 17")
    E.e(f"s_lshl_b32 s{sT}, s{sH}, 8")
    E.e(f"s_add_u32 s{sWo}, s{sWo}, s{sT}")
    E.e(f"s_cmp_lt_u32 s{sW}, 2")
    E.e(f"s_mov_b32 s{sT}, {hex(WS_V - 8192)}")
    E.e(f"s_cselect_b32 s{sSrc0}, {hex(WS_K)}, s{sT}")
    E.e(f"s_mov_b32 s{sT}, {hex(WS_V + 8192)}")
    E.e(f"s_cselect_b32 s{sSrc1}, {hex(WS_K)}, s{sT}")
    E.e(f"s_lshl_b32 s{sT}, s{sH}, 19")
    E.e(f"s_and_b32 s{sT2}, s{sW}, 1")
    E.e(f"s_lshl_b32 s{sT2}, s{sT2}, 12")
    E.e(f"s_add_u32 s{sT}, s{sT}, s{sT2}")
    E.e(f"s_add_u32 s{sSrc0}, s{sSrc0}, s{sT}")
    E.e(f"s_add_u32 s{sSrc1}, s{sSrc1}, s{sT}")
    E.e(f"s_lshl_b32 s{sT}, s{sP}, 2")
    E.e(f"s_sub_u32 s{sT2}, 63, s{sT}")
    E.e(f"s_lshl_b32 s{sT2}, s{sT2}, 13")
    E.e(f"s_add_u32 s{sSrc1}, s{sSrc1}, s{sT2}")
    E.e(f"s_mov_b32 s{eSw}, s{sT}")
    E.e(f"s_lshl_b32 s{sT2}, s{sW}, 1")
    E.e(f"s_add_u32 s{sT2}, s{sT2}, s{sT}")
    E.e(f"s_sub_u32 s{sT2}, s{sT2}, 4")
    E.e(f"s_cmp_lt_u32 s{sW}, 2")
    E.e(f"s_cselect_b32 s{eDr}, 32, s{sT2}")
    E.e(f"s_mov_b32 s{eP1}, s{eDr}")
    E.e(f"s_add_u32 s{eP2}, s{eDr}, 1")
    E.e(f"s_add_u32 s{eDr}, s{eDr}, 2")
    E.e(f"s_mov_b32 s{ePl}, 100")
    E.e(f"s_cmp_eq_u32 s{sP}, 7")
    E.e(f"s_cselect_b32 s{sT}, 1, 0")
    E.e(f"s_cmp_ge_u32 s{sW}, s{sT}")
    E.e(f"s_cselect_b32 s{sT2}, 1, 0")
    E.e(f"s_cmp_lt_u32 s{sW}, 2")
    E.e(f"s_cselect_b32 s{sT2}, s{sT2}, 0")
    E.e(f"s_cmp_eq_u32 s{sT2}, 1")
    E.e(f"s_cselect_b32 s{eP1}, 100, s{eP1}")
    E.e(f"s_cselect_b32 s{eP2}, 100, s{eP2}")
    E.e(f"s_mov_b32 s{sDual}, 0")
    E.e(f"s_mov_b32 s{sSeg}, 0")
    E.e(f"s_mov_b32 s{sRP}, s{sWl}")
    E.e(f"v_mov_b32 v{vMask}, 0xc000")
    E.e(f"v_mov_b32 v{vRd}, v{vL16}")
    E.e("s_waitcnt lgkmcnt(0)")
    srd(E, SWQ, 4, 0x400000); srd(E, SWS, 6, WS_SIZE); srd(E, SKV, 6, WS_SIZE)

    def dma_w(j):
        ops = []
        for i in range(4):
            def op(E, i=i):
                if i == 0:
                    E.e(f"s_add_u32 m0, s{sWl}, {L_WQ + j*16384}")
                    E.e(f"s_add_u32 s{sT2}, s{sWo}, {j*64*8192}")
                E.vmem(f"buffer_load_dwordx4 v{vWD+i}, {s4(SWQ)}, s{sT2} offen offset:{i*1024} lds", f"c{j}")
            ops.append(op)
        return ops
    def ld_xn(j):
        ops = []
        for ks in range(2):
            kb = 2 * j + ks
            for b in range(4):
                def op(E, kb=kb, b=b):
                    if b == 0: E.e(f"s_add_u32 s{sT}, s{sXN}, {kb*4096}")
                    E.vmem(f"buffer_load_dwordx4 {a4(XF(kb,b))}, v{vL16}, {s4(SWS)}, s{sT} offen offset:{b*1024}", f"c{j}")
                ops.append(op)
        return ops
    def dma_unit0(u):
        ops = []
        for i in range(4):
            def op(E, i=i):
                if i == 0:
                    E.e(f"s_add_u32 m0, s{sWl}, {u*16384}")
                    E.e("s_nop 0")
                E.vmem(f"buffer_load_dwordx4 v{vL16}, {s4(SKV)}, s{sSrc0} offen offset:{i*1024} lds", f"u{u}")
                if i == 3: E.e(f"s_add_u32 s{sSrc0}, s{sSrc0}, 8192")
            ops.append(op)
        return ops
    for j in range(5):
        for op in dma_w(j) + ld_xn(j): op(E)
    stamp(E, 1)
    E.wait_vm("c0")
    E.e("s_barrier")
    stamp(E, 2)
    W = Weave()
    S = Stream(W, lead=20, age=10, maxper=1)
    BARPOS = 46
    ring_last = {}
    fi = 0
    for j in range(8):
        ea = -10**9 if j == 0 else (j - 1) * 64 + BARPOS
        for ks in range(2):
            kb = 2 * j + ks
            for c in range(8):
                base = len(W.bb)
                r = WF + (fi % 8) * 4
                off = (j % 4) * 16384 + ks * 8192
                S.read(f"wf{fi}", [f"ds_read_b64_tr_b16 {v2(r)}, v{vW+c} offset:{off}", f"ds_read_b64_tr_b16 {v2(r+2)}, v{vW+c} offset:{off+1024}"],
                       base, max(ea, ring_last.get(fi % 8, -10**9)), latest=j * 64 + BARPOS)
                ring_last[fi % 8] = base + 3
                fi += 1
                for b in range(4):
                    W.mf(f"{MFMA} {v4(QT(c,b))}, {v4(r)}, {a4(XF(kb,b))}, {'0' if kb == 0 else v4(QT(c,b))}")
    def spread(ops, s0, s1):
        n = len(ops)
        for k, op in enumerate(ops): W.add(s0 + (k * (s1 - s0)) // n, op)
    def barrier_at(slot, vmtags):
        def f(E):
            E.wait_vm(*vmtags)
            E.e("s_waitcnt lgkmcnt(0)"); E.lg = []
            E.e("s_barrier")
        W.post[slot].insert(0, f)
    for j in range(8):
        bs = j * 64 + BARPOS
        barrier_at(bs, [f"c{j+1}"] if j < 7 else ["u0"])
    spread(dma_w(5) + ld_xn(5), 2, 44)
    spread(dma_w(6) + ld_xn(6), 64 + 2, 64 + 44)
    spread(dma_w(7) + ld_xn(7), 128 + 2, 128 + 44)
    spread(dma_unit0(0) + dma_unit0(1), 192 + 2, 192 + 44)
    spread(dma_unit0(2) + dma_unit0(3), 256 + 2, 256 + 44)
    def win2(E):
        for c in range(8): E.e(f"v_add_u32 v{vW+c}, 0x10000, v{vW+c}")
    W.post[3 * 64 + BARPOS].insert(1, win2)
    pend = []
    for t in range(4):
        for b in range(4):
            for h in range(4):
                src = QT(2 * t + (h >> 1), b) + (h & 1) * 2
                pend.append((480 + 4 * (2 * t + 1) + b + 5, f"v_cvt_pk_bf16_f32 v{QV(b,t)+h}, v{src}, v{src+1}"))
    tail = []
    cnt = {}
    for sl, tx in pend:
        while sl < 512 and cnt.get(sl, 0) >= 2: sl += 1
        if sl < 512:
            W.add(sl, tx); cnt[sl] = cnt.get(sl, 0) + 1
        else: tail.append(tx)
    W.pre(256, lambda E: stamp(E, 3))
    S.place(E)
    W.emit(E)
    stamp(E, 4)
    for i in range(8):
        E.lds(f"ds_read_b128 {a4(KF(i))}, v{vRd} offset:{i*1024}", "k")
    E.e("s_nop 1")
    for tx in tail: E.e(tx)
    for k in range(4): E.e(f"v_mov_b32 v{ONES+k}, 0x3f803f80")
    for k in range(16): E.e(f"v_mov_b32 v{LS(0)+k}, 0")
    for k in range(4): E.e(f"v_mov_b32 v{NEGM+k}, 0")
    E.e(f"v_and_b32 v{vT}, 15, v{vLane}")
    E.e(f"v_lshrrev_b32 v{vT+1}, 4, v{vLane}")
    E.e(f"v_lshlrev_b32 v{vT+1}, 2, v{vT+1}")
    E.e(f"v_sub_u32 v{vT}, v{vT}, v{vT+1}")
    E.e(f"v_mov_b32 v{vT+2}, {BIGNEG}")
    for r in range(4):
        E.e(f"v_cmp_gt_i32 vcc, {r}, v{vT}")
        E.e("s_nop 1")
        E.e(f"v_cndmask_b32 v{DM+r}, 0, v{vT+2}, vcc")
    E.e(f"s_cmp_ge_u32 s{sW}, 2")
    E.e(f"s_cbranch_scc1 {N}_noq")
    E.e(f"s_lshl_b32 s{sT}, s{sW}, 14")
    E.e(f"s_add_u32 s{sT}, s{sT}, {L_QX}")
    E.e(f"v_add_u32 v{vT}, s{sT}, v{vL16}")
    for k in range(16): E.e(f"ds_write_b128 v{vT}, {v4(192+4*k)} offset:{k*1024}")
    E.e(f"{N}_noq:")
    def zero_O(E):
        for k in range(4): E.e(f"v_mov_b32 v{vT+4+k}, 0")
        E.e("s_nop 1")
        for c in range(8):
            for b in range(4):
                E.e(f"{MFMA} {a4(O(c,b))}, {v4(vT+4)}, {v4(vT+4)}, 0")
    assert (vT + 4) % 2 == 0
    zero_O(E)

    def pattern(E, kind):
        for a in range(2):
            for b in range(4):
                rel = (16 * a + (32 if kind == 2 else 0)) - 16 * b if kind else -1
                for r in range(4):
                    if rel < 0: E.e(f"v_mov_b32 v{IN(a,b)+r}, v{NEGM+b}")
                    elif rel == 0: E.e(f"v_add_f32 v{IN(a,b)+r}, v{NEGM+b}, v{DM+r}")
                    else: E.e(f"v_mov_b32 v{IN(a,b)+r}, {BIGNEG}")
    pattern(E, 0)
    E.e(f"s_cmp_lg_u32 s{eP1}, 0")
    E.e(f"s_cbranch_scc1 {N}_fill")
    pattern(E, 1)
    E.e(f"{N}_fill:")
    stamp(E, 5)

    SM0 = 22
    def sm_ops(par):
        ops = []
        k = 0
        for a in range(2):
            for b in range(4):
                for r in range(4):
                    reg = Sb(par, a, b) + r
                    ops.append((SM0 + 2 * k, f"v_exp_f32 v{reg}, v{reg}"))
                    if r & 1:
                        ops.append((SM0 + 2 * k + 1, f"v_cvt_pk_bf16_f32 v{Pb(par,b)+a*2+r//2}, v{reg-1}, v{reg}"))
                    k += 1
        return ops
    def sm_batch(E, ops):
        for tx in ops:
            if "v_exp" in tx: E.e(tx)
        E.e("s_nop 0")
        for tx in ops:
            if "v_exp" not in tx: E.e(tx)
    def qk_mf(par):
        L = []
        for a in range(2):
            for t in range(4):
                for b in range(4):
                    c = v4(IN(a, b)) if t == 0 else v4(Sb(par, a, b))
                    L.append(f"{MFMA} {v4(Sb(par,a,b))}, {a4(KF(a*4+t))}, {v4(QV(b,t))}, {c}")
        return L
    def pv_mf(par):
        pp = par ^ 1
        L = []
        for c in range(8):
            for b in range(4):
                L.append(f"{MFMA} {a4(O(c,b))}, {a4(VF(c))}, {v4(Pb(pp,b))}, {a4(O(c,b))}")
            if c == 3:
                for b in range(4):
                    L.append(f"{MFMA} {v4(LS(b))}, {v4(ONES)}, {v4(Pb(pp,b))}, {v4(LS(b))}")
        return L
    rdK = lambda i: f"ds_read_b128 {a4(KF(i))}, v{vRd} offset:{i*1024}"
    rdV = lambda c: f"ds_read_b128 {a4(VF(c))}, v{vRd} offset:{8192 + c*1024}"
    def mid(dual, vm=None):
        n = vm if vm is not None else (16 if dual else 8)
        return [f"s_waitcnt vmcnt({n}) lgkmcnt(0)", "s_barrier"]
    adv = [f"s_mov_b32 m0, s{sRP}", f"s_add_u32 s{sRP}, s{sRP}, 0x4000", f"s_and_b32 s{sRP}, s{sRP}, 0xffff",
           f"v_bfi_b32 v{vRd}, v{vMask}, s{sRP}, v{vRd}"]
    dma0 = [f"buffer_load_dwordx4 v{vL16}, {s4(SKV)}, s{sSrc0} offen offset:{i*1024} lds" for i in range(4)]
    dma1 = [f"buffer_load_dwordx4 v{vL16}, {s4(SKV)}, s{sSrc1} offen offset:{i*1024} lds" for i in range(4)]
    adv0 = f"s_add_u32 s{sSrc0}, s{sSrc0}, 8192"
    adv1 = f"s_sub_u32 s{sSrc1}, s{sSrc1}, 8192"
    m1 = "s_add_u32 m0, m0, 0x10000"

    def full_body(E, par, dual):
        W = Weave()
        for m in qk_mf(par) + pv_mf(par): W.mf(m)
        for g, tx in sm_ops(par):
            if g < 68: W.add(g, tx)
        for g, tx in sm_ops(par ^ 1):
            if g >= 68: W.add(g - 68, tx)
        W.pre(0, "s_waitcnt lgkmcnt(4)")
        for c in range(4, 8): W.add(1 + 4 * (c - 4) + 2, rdV(c))
        for x in mid(dual): W.pre(32, x)
        W.add(32, adv[0]); W.add(33, adv[1]); W.add(33, adv[2]); W.add(34, adv[3])
        gK = [35, 37, 39, 41, 43, 45, 47, 49]
        for i in range(8): W.add(gK[i], rdK(i))
        gV = [55, 59, 63, 65]
        for c in range(4): W.add(gV[c], rdV(c))
        if dual:
            g0 = [36, 40, 44, 48]; g1 = [52, 56, 60, 64]
            for i in range(4): W.add(g0[i], dma0[i])
            W.add(50, adv0); W.add(51, m1)
            for i in range(4): W.add(g1[i], dma1[i])
            W.add(66, adv1)
        else:
            g0 = [40, 48, 53, 61]
            for i in range(4): W.add(g0[i], dma0[i])
            W.add(63, adv0)
        W.add(67, f"s_sub_u32 s{sCnt}, s{sCnt}, 1")
        W.emit(E)
        E.e(f"s_cbranch_scc1 {N}_event")

    def post_mid(E, dual_always, reads=True):
        for x in adv: E.e(x)
        if reads:
            for i in range(8): E.e(rdK(i))
        for x in dma0: E.e(x)
        E.e(adv0)
        if not dual_always:
            E.e(f"s_cmp_lg_u32 s{eSw}, 0")
            E.e(f"s_cbranch_scc1 {N}_fill_nodual")
        E.e(m1); E.e("s_nop 0")
        for x in dma1: E.e(x)
        E.e(adv1)
        if not dual_always:
            E.e(f"s_mov_b32 s{sDual}, 1")
            E.e(f"{N}_fill_nodual:")

    E.e("s_waitcnt lgkmcnt(0)")
    for m in qk_mf(0): E.e(m)
    for x in mid(False, vm=4): E.e(x)
    post_mid(E, False)
    for c in range(4): E.e(rdV(c))
    MX = vT
    for b in range(4):
        s0, s1 = Sb(0, 0, b), Sb(0, 1, b)
        E.e(f"v_max3_f32 v{MX+b}, v{s0}, v{s0+1}, v{s0+2}")
        E.e(f"v_max3_f32 v{MX+b}, v{MX+b}, v{s0+3}, v{s1}")
        E.e(f"v_max3_f32 v{MX+b}, v{MX+b}, v{s1+1}, v{s1+2}")
        E.e(f"v_max_f32 v{MX+b}, v{MX+b}, v{s1+3}")
    for sw in ("v_permlane16_swap_b32", "v_permlane32_swap_b32"):
        for b in range(4): E.e(f"v_mov_b32 v{MX+4+b}, v{MX+b}")
        E.e("s_nop 1")
        for b in range(4): E.e(f"{sw} v{MX+b}, v{MX+4+b}")
        for b in range(4): E.e(f"v_max_f32 v{MX+b}, v{MX+b}, v{MX+4+b}")
    for b in range(4): E.e(f"v_sub_f32 v{NEGM+b}, 0, v{MX+b}")
    for b in range(4):
        for k in range(8): E.e(f"v_add_f32 v{Sb(0,0,b)+k}, v{Sb(0,0,b)+k}, v{NEGM+b}")
    E.e(f"s_lshl_b32 s{sT}, s{sW}, 10")
    E.e(f"s_add_u32 s{sT}, s{sT}, {L_NM}")
    E.e(f"v_add_u32 v{vT+8}, s{sT}, v{vL16}")
    E.e(f"ds_write_b128 v{vT+8}, {v4(NEGM)}")
    E.e(f"s_sub_u32 s{sT}, 3, s{sW}")
    E.e(f"s_and_b32 s{sT}, s{sT}, 1")
    E.e(f"s_lshl_b32 s{sT}, s{sT}, 14")
    E.e(f"s_add_u32 s{sT}, s{sT}, {L_QX}")
    E.e(f"v_add_u32 v{vT+9}, s{sT}, v{vL16}")
    for k in range(16): E.e(f"ds_read_b128 {a4(128+4*k)}, v{vT+9} offset:{k*1024}")
    sm_batch(E, [tx for g, tx in sm_ops(0) if g < 68])
    pattern(E, 0)
    E.e("s_waitcnt lgkmcnt(0)")
    E.e("s_barrier")
    E.e(f"s_sub_u32 s{sT}, 3, s{sW}")
    E.e(f"s_lshl_b32 s{sT}, s{sT}, 10")
    E.e(f"s_add_u32 s{sT}, s{sT}, {L_NM}")
    E.e(f"v_add_u32 v{vT+8}, s{sT}, v{vL16}")
    E.e(f"ds_read_b128 {v4(NEGA)}, v{vT+8}")
    E.e("s_waitcnt lgkmcnt(0)")
    E.e(f"s_mov_b32 s{sEv}, 1")
    stamp(E, 6)

    E.e(f"{N}_event:")
    E.e(f"s_cmp_eq_u32 s{sEv}, s{eDr}")
    E.e(f"s_cbranch_scc1 {N}_drain")
    E.e(f"s_cmp_lg_u32 s{sEv}, s{eSw}")
    E.e(f"s_cbranch_scc1 {N}_ev1")
    E.e("s_waitcnt vmcnt(4)")
    stamp(E, 7)
    E.e(f"s_mov_b32 s{sDual}, 1")
    E.e(f"{N}_ev1:")
    E.e(f"s_cmp_lg_u32 s{sEv}, s{eP1}")
    E.e(f"s_cbranch_scc1 {N}_ev2")
    pattern(E, 1)
    E.e(f"{N}_ev2:")
    E.e(f"s_cmp_lg_u32 s{sEv}, s{eP2}")
    E.e(f"s_cbranch_scc1 {N}_ev3")
    pattern(E, 2)
    E.e(f"{N}_ev3:")
    E.e(f"s_cmp_lg_u32 s{sEv}, s{ePl}")
    E.e(f"s_cbranch_scc1 {N}_ev4")
    pattern(E, 0)
    E.e(f"{N}_ev4:")
    E.e(f"s_mov_b32 s{sT}, s{eDr}")
    for ev in (eSw, eP1, eP2, ePl):
        E.e(f"s_cmp_gt_u32 s{ev}, s{sEv}")
        E.e(f"s_cselect_b32 s{sT2}, s{ev}, 100")
        E.e(f"s_min_u32 s{sT}, s{sT}, s{sT2}")
    E.e(f"s_sub_u32 s{sCnt}, s{sT}, s{sEv}")
    E.e(f"s_sub_u32 s{sCnt}, s{sCnt}, 1")
    E.e(f"s_and_b32 s{sT2}, s{sEv}, 1")
    E.e(f"s_mov_b32 s{sEv}, s{sT}")
    E.e(f"s_cmp_eq_u32 s{sDual}, 1")
    E.e(f"s_cbranch_scc1 {N}_ev5")
    E.e(f"s_cmp_eq_u32 s{sT2}, 1")
    E.e(f"s_cbranch_scc1 {N}_O1")
    E.e(f"s_branch {N}_E1")
    E.e(f"{N}_ev5:")
    E.e(f"s_cmp_eq_u32 s{sT2}, 1")
    E.e(f"s_cbranch_scc1 {N}_O2")
    E.e(f"s_branch {N}_E2")

    marks = {}
    for dual in (0, 1):
        E.e(".p2align 6")
        marks[("O", dual)] = len(E.L)
        E.e(f"{N}_O{dual+1}:")
        full_body(E, 1, dual)
        marks[("E", dual)] = len(E.L)
        E.e(f"{N}_E{dual+1}:")
        full_body(E, 0, dual)
        E.e(f"s_branch {N}_O{dual+1}")
        marks[("X", dual)] = len(E.L)

    E.e(f"{N}_drain:")
    for c in range(4, 8): E.e(rdV(c))
    sm_batch(E, [tx for g, tx in sm_ops(1) if g >= 68])
    E.e(f"s_cmp_eq_u32 s{eDr}, 34")
    E.e(f"s_cbranch_scc1 {N}_final")
    for x in mid(True): E.e(x)
    W = Weave()
    for m in pv_mf(0): W.mf(m)
    W.add(0, adv[0]); W.add(1, adv[1]); W.add(1, adv[2]); W.add(2, adv[3])
    for i in range(4): W.add(4 + 3 * i, dma0[i])
    W.add(15, adv0); W.add(16, m1)
    for i in range(4): W.add(18 + 3 * i, dma1[i])
    W.add(30, adv1)
    W.emit(E)
    def normalize_store(E, cs, sbase, add_from=None, split=None):
        k = 0
        for t in sorted(set(c // 2 for c in cs)):
            for b in range(4):
                tmp = (k % 4) * 8 + (64 if add_from is not None else 0)
                for h in range(2):
                    for r in range(4):
                        E.e(f"v_accvgpr_read_b32 v{tmp+h*4+r}, a{O(2*t+h,b)+r}")
                if add_from is not None:
                    for h in range(2):
                        src = add_from(2 * t + h, b)
                        for r in range(0, 4, 2):
                            E.e(f"v_pk_add_f32 {v2(tmp+h*4+r)}, {v2(tmp+h*4+r)}, {v2(src+r)}")
                for r in range(0, 8, 2):
                    E.e(f"v_pk_mul_f32 {v2(tmp+r)}, {v2(tmp+r)}, {v2(RV+2*b)}")
                for r in range(4):
                    E.e(f"v_cvt_pk_bf16_f32 v{tmp+r}, v{tmp+2*r}, v{tmp+2*r+1}")
                if b == 0: E.e(f"s_add_u32 s{sT}, s{sbase}, {t*4096}")
                E.e(f"buffer_store_dwordx4 {v4(tmp)}, v{vL16}, {s4(SWS)}, s{sT} offen offset:{b*1024}{stflag}")
                k += 1
                if split is not None and k == split[0]: split[1](E)
    RV = vT
    assert RV % 2 == 0
    def rinv(E):
        for b in range(4): E.e(f"v_rcp_f32 v{RV+2*b}, v{LS(b)}")
        E.e("s_nop 0")
        for b in range(4): E.e(f"v_mov_b32 v{RV+2*b+1}, v{RV+2*b}")
    E.e("s_nop 7")
    stamp(E, 8)
    rinv(E)
    def epi_mid(E):
        for x in mid(True): E.e(x)
        for x in adv[:3]: E.e(x)
        E.e(f"v_or_b32 v{vRd}, 0x10000, v{vRd}")
        E.e(adv[3])
        for i in range(8): E.e(rdK(i))
        for x in dma0: E.e(x)
        E.e(adv0); E.e(m1); E.e("s_nop 0")
        for x in dma1: E.e(x)
        E.e(adv1)
    normalize_store(E, range(8), sTgO, split=(6, epi_mid))
    for k in range(64): E.e(f"v_accvgpr_read_b32 v{192+k}, a{128+k}")
    for k in range(4): E.e(f"v_mov_b32 v{NEGM+k}, v{NEGA+k}")
    for k in range(16): E.e(f"v_mov_b32 v{LS(0)+k}, 0")
    zero_O(E)
    stamp(E, 9)
    E.e(f"s_add_u32 s{sEv}, s{eDr}, 3")
    E.e(f"s_mov_b32 s{eP1}, s{sEv}")
    E.e(f"s_add_u32 s{ePl}, s{eDr}, 4")
    E.e(f"s_mov_b32 s{eP2}, 100")
    E.e(f"s_cmp_eq_u32 s{eDr}, 32")
    E.e(f"s_mov_b32 s{eDr}, 34")
    E.e(f"s_cbranch_scc1 {N}_idle34")
    pattern(E, 2)
    E.e("s_waitcnt lgkmcnt(0)")
    for m in qk_mf(0): E.e(m)
    for x in mid(True): E.e(x)
    post_mid(E, True)
    for c in range(4): E.e(rdV(c))
    sm_batch(E, [tx for g, tx in sm_ops(0) if g < 68])
    E.e(f"s_branch {N}_event")

    E.e(f"{N}_idle34:")
    for x in mid(True, vm=0): E.e(x)
    E.e(f"s_branch {N}_merge")
    E.e(f"{N}_final:")
    stamp(E, 10)
    for x in mid(True, vm=0): E.e(x)
    for m in pv_mf(0): E.e(m)
    E.e(f"{N}_merge:")
    stamp(E, 11)
    E.e(f"s_lshl_b32 s{sT}, s{sW}, 14")
    E.e(f"v_add_u32 v{vT+8}, s{sT}, v{vL16}")
    E.e(f"s_sub_u32 s{sT2}, 3, s{sW}")
    E.e(f"s_lshl_b32 s{sT}, s{sT2}, 14")
    E.e(f"v_add_u32 v{vT+9}, s{sT}, v{vL16}")
    E.e(f"s_lshl_b32 s{sT}, s{sW}, 10")
    E.e(f"s_add_u32 s{sT}, s{sT}, 65536")
    E.e(f"v_add_u32 v{vT+10}, s{sT}, v{vL16}")
    E.e(f"s_lshl_b32 s{sT}, s{sT2}, 10")
    E.e(f"s_add_u32 s{sT}, s{sT}, 65536")
    E.e(f"v_add_u32 v{vT+11}, s{sT}, v{vL16}")
    for b in range(4): E.e(f"v_mov_b32 v{NEGM+b}, v{LS(b)}")
    E.e(f"ds_write_b128 v{vT+10}, {v4(NEGM)}")
    E.e(f"s_cmp_ge_u32 s{sW}, 2")
    E.e(f"s_cbranch_scc1 {N}_merge_hi")
    for keep, lab in ((0, ""), (1, "_hi")):
        if keep: E.e(f"{N}_merge_hi:")
        send = 64 * (1 - keep)
        for k in range(16): E.e(f"ds_write_b128 v{vT+8}, {a4(send + 4*k)} offset:{k*1024}")
        E.e("s_waitcnt lgkmcnt(0)")
        E.e("s_barrier")
        E.e(f"ds_read_b128 {v4(NEGA)}, v{vT+11}")
        for k in range(16): E.e(f"ds_read_b128 {v4(4*k)}, v{vT+9} offset:{k*1024}")
        E.e("s_waitcnt lgkmcnt(0)")
        for b in range(4): E.e(f"v_add_f32 v{LS(b)}, v{NEGM+b}, v{NEGA+b}")
        rinv(E)
        normalize_store(E, range(4 * keep, 4 * keep + 4), sTgA, add_from=lambda c, b: O(c, b) - 64 * keep)
        if PROF["on"]:
            stamp(E, 12)
            E.e("s_waitcnt vmcnt(0)")
        stamp_flush(E, 2, 4, SWS, sW, 0)
        if not keep: E.e("s_endpgm")
    E.e(f"{N}_end:")
    E.e("s_endpgm")
    for p in check(E.L, name): print("HAZARD", p)
    for dual in (0, 1):
        body = E.L[marks[("O", dual)]:marks[("X", dual)]]
        for p in check(body + body, name + f" loop{dual}"): print("HAZARD", p)
    return head(name) + E.text(), kd(name, 512, 256, 96)

if __name__ == "__main__":
    t, k = gen_k2()
    print(len(t.splitlines()))
```

```python
from common import *

def gen_k3(name="k3_kernel"):
    E = Em()
    SX, SWS, SO = 20, 24, 28
    sW, sTg, sMg, sT, sT2, sA, sB = 32, 33, 34, 35, 36, 37, 38
    sIDX = 40
    sG, sK, sSl, sRet, SYP = 48, 49, 50, 52, 56
    ACC = 0
    RING = 64
    vL16, vLane, vT = 192, 193, 194
    vX, vXN = 200, 204
    vRow, vCg = 208, 209
    vY = 212
    vSig = 220
    DEPTH = 4
    E.e("s_cmp_ge_u32 s2, 256")
    E.e(f"s_cbranch_scc1 {name}_end")
    stamp_init(E)
    E.e("s_load_dwordx2 s[4:5], s[0:1], 0")
    E.e("s_load_dwordx2 s[6:7], s[0:1], 88")
    E.e("s_load_dwordx2 s[8:9], s[0:1], 104")
    E.e(f"v_and_b32 v{vLane}, 63, v0")
    E.e(f"v_lshrrev_b32 v{vT}, 6, v0")
    E.e(f"v_lshlrev_b32 v{vL16}, 4, v{vLane}")
    E.e(f"v_readfirstlane_b32 s{sW}, v{vT}")
    E.e(f"v_lshrrev_b32 v{vRow}, 3, v0")
    E.e(f"v_and_b32 v{vCg}, 7, v0")
    E.e(f"s_and_b32 s{sT}, s2, 7")
    E.e(f"s_lshr_b32 s{sT2}, s2, 3")
    E.e(f"s_and_b32 s{sMg}, s{sT2}, 7")
    E.e(f"s_lshr_b32 s{sT2}, s{sT2}, 3")
    E.e(f"s_lshl_b32 s{sTg}, s{sT}, 2")
    E.e(f"s_add_u32 s{sTg}, s{sTg}, s{sT2}")
    E.e(f"s_lshl_b32 s{sT}, s{sW}, 16")
    E.e(f"s_lshl_b32 s{sA}, s{sMg}, 19")
    E.e(f"s_add_u32 s{sA}, s{sA}, s{sT}")
    E.e(f"s_add_u32 s{sA}, s{sA}, {hex(WS_WOF)}")
    E.e(f"s_lshl_b32 s{sB}, s{sTg}, 19")
    E.e(f"s_add_u32 s{sB}, s{sB}, s{sT}")
    E.e(f"s_add_u32 s{sB}, s{sB}, {hex(WS_CTX)}")
    E.e("s_waitcnt lgkmcnt(0)")
    srd(E, SX, 4, 0x200000); srd(E, SWS, 8, WS_SIZE); srd(E, SO, 6, 0x200000)
    E.e(f"s_add_u32 s12, s8, {hex(WS_YP)}")
    E.e(f"s_addc_u32 s13, s9, 0")
    srd(E, SYP, 12, NP * 16384)
    E.e(f"s_add_u32 s10, s8, {hex(WS_IDX)}")
    E.e(f"s_addc_u32 s11, s9, 0")
    E.e(f"s_load_dwordx8 s[{sIDX}:{sIDX+7}], s[10:11], 0")
    RA = lambda ks, t: RING + ((ks % DEPTH) * 8 + t) * 4
    RB = lambda ks, t: RING + ((ks % DEPTH) * 8 + 4 + t) * 4
    def loads(ks):
        ops = []
        for t in range(4):
            def opb(E, t=t):
                if t == 0: E.e(f"s_add_u32 s{sT2}, s{sB}, {ks*4096}")
                E.vmem(f"buffer_load_dwordx4 {v4(RB(ks,t))}, v{vL16}, {s4(SWS)}, s{sT2} offen offset:{t*1024}", f"k{ks}")
            ops.append(opb)
        for t in range(4):
            def opa(E, t=t):
                if t == 0: E.e(f"s_add_u32 s{sT}, s{sA}, {ks*4096}")
                E.vmem(f"buffer_load_dwordx4 {v4(RA(ks,t))}, v{vL16}, {s4(SWS)}, s{sT} offen offset:{t*1024}", f"k{ks}")
            ops.append(opa)
        return ops
    for ks in range(DEPTH):
        for op in loads(ks): op(E)
    for k in range(8): E.e(f"v_mov_b32 v{vY+k}, 0")
    E.e("s_waitcnt lgkmcnt(0)")
    E.e(f"s_lshl_b32 s{sG}, s{sTg}, 3")
    E.e(f"s_add_u32 s{sG}, s{sG}, s{sW}")
    NIT = (NP + 7) // 8
    YT = 0
    for k in range(8):
        E.e(f"s_and_b32 s{sT}, s{sIDX+k}, 0xffff")
        E.e(f"s_sub_u32 s{sT}, 2047, s{sT}")
        E.e(f"s_lshr_b32 s{sT2}, s{sT}, 3")
        E.e(f"s_cmp_lg_u32 s{sT2}, s{sG}")
        E.e(f"s_cbranch_scc1 {name}_nu{k}")
        E.e(f"s_mov_b32 s{sK}, s{sIDX+k}")
        E.e(f"s_movk_i32 s{sSl}, {k*2048}")
        E.e(f"s_getpc_b64 s[{sRet}:{sRet+1}]")
        E.e(f"s_branch {name}_upd")
        E.e(f"{name}_nu{k}:")
    E.e(f"s_branch {name}_main")
    E.e(f"{name}_upd:")
    E.e(f"v_lshrrev_b32 v{vT+3}, 3, v{vLane}")
    E.e(f"v_lshlrev_b32 v{vT+4}, 14, v{vT+3}")
    E.e(f"v_lshl_add_u32 v{vT+4}, v{vCg}, 5, v{vT+4}")
    E.e(f"s_lshl_b32 s{sT2}, s{sMg}, 8")
    E.e(f"s_add_u32 s{sSl}, s{sSl}, s{sT2}")
    for it in range(NIT):
        E.e(f"buffer_load_dwordx4 {v4(YT+8*it)}, v{vT+4}, {s4(SYP)}, s{sSl} offen")
        E.e(f"buffer_load_dwordx4 {v4(YT+8*it+4)}, v{vT+4}, {s4(SYP)}, s{sSl} offen offset:16")
        E.e(f"s_add_u32 s{sSl}, s{sSl}, {8*16384}")
    E.e(f"s_and_b32 s{sT2}, s{sK}, 0xffff0000")
    E.e(f"v_mov_b32 v{vSig}, s{sT2}")
    E.e(f"v_ashrrev_i32 v{vT+5}, 31, v{vSig}")
    E.e(f"v_not_b32 v{vT+5}, v{vT+5}")
    E.e(f"v_or_b32 v{vT+5}, 0x80000000, v{vT+5}")
    E.e(f"v_xor_b32 v{vSig}, v{vSig}, v{vT+5}")
    E.e(f"v_and_b32 v{vSig}, 0xffff0000, v{vSig}")
    E.e(f"v_mul_f32 v{vSig}, 0xbfb8aa3b, v{vSig}")
    E.e(f"v_exp_f32 v{vSig}, v{vSig}")
    E.e("s_nop 0")
    E.e(f"v_add_f32 v{vSig}, 1.0, v{vSig}")
    E.e(f"v_rcp_f32 v{vSig}, v{vSig}")
    E.e("s_nop 0")
    E.e(f"v_cvt_pk_bf16_f32 v{vSig}, v{vSig}, v{vSig}")
    E.e(f"v_lshlrev_b32 v{vSig}, 16, v{vSig}")
    E.e("s_waitcnt vmcnt(0)")
    for it in range(1, NIT):
        for k in range(8): E.e(f"v_add_f32 v{YT+k}, v{YT+k}, v{YT+8*it+k}")
    E.e("s_nop 1")
    for k in range(8): E.e(f"v_add_f32_dpp v{YT+k}, v{YT+k}, v{YT+k} row_ror:8 row_mask:0xf bank_mask:0xf")
    for sw in ("v_permlane16_swap_b32", "v_permlane32_swap_b32"):
        for k in range(8): E.e(f"v_mov_b32 v{YT+8+k}, v{YT+k}")
        E.e("s_nop 1")
        for k in range(8): E.e(f"{sw} v{YT+k}, v{YT+8+k}")
        for k in range(8): E.e(f"v_add_f32 v{YT+k}, v{YT+k}, v{YT+8+k}")
    for k in range(4): E.e(f"v_cvt_pk_bf16_f32 v{YT+8+k}, v{YT+2*k}, v{YT+2*k+1}")
    for k in range(4):
        E.e(f"v_lshlrev_b32 v{YT+2*k}, 16, v{YT+8+k}")
        E.e(f"v_and_b32 v{YT+2*k+1}, 0xffff0000, v{YT+8+k}")
    for k in range(8): E.e(f"v_mul_f32 v{YT+k}, v{YT+k}, v{vSig}")
    for k in range(4): E.e(f"v_cvt_pk_bf16_f32 v{YT+8+k}, v{YT+2*k}, v{YT+2*k+1}")
    for k in range(4):
        E.e(f"v_lshlrev_b32 v{YT+2*k}, 16, v{YT+8+k}")
        E.e(f"v_and_b32 v{YT+2*k+1}, 0xffff0000, v{YT+8+k}")
    E.e(f"s_and_b32 s{sT}, s{sT}, 7")
    E.e(f"v_cmp_eq_u32 vcc, s{sT}, v{vT+3}")
    E.e("s_nop 1")
    for k in range(8): E.e(f"v_cndmask_b32 v{vY+k}, v{vY+k}, v{YT+k}, vcc")
    E.e(f"s_add_u32 s{sRet}, s{sRet}, 4")
    E.e(f"s_addc_u32 s{sRet+1}, s{sRet+1}, 0")
    E.e(f"s_setpc_b64 s[{sRet}:{sRet+1}]")
    E.e(f"{name}_main:")
    stamp(E, 1)
    W = Weave()
    for ks in range(16):
        base = len(W.bb)
        for mt in range(4):
            for qt in range(4):
                acc = v4(ACC + (mt * 4 + qt) * 4)
                W.mf(f"{MFMA} {acc}, {v4(RA(ks,mt))}, {v4(RB(ks,qt))}, {'0' if ks == 0 else acc}")
        W.pre(base, (lambda ks: lambda E: E.wait_vm(f"k{ks}"))(ks))
    for ks in range(16 - DEPTH):
        ops = loads(ks + DEPTH)
        for k, op in enumerate(ops):
            W.add((ks + 1) * 16 + k if (ks + 1) * 16 + k < 256 else 255, op)
    def epi_loads(E):
        E.e(f"v_lshlrev_b32 v{vT}, 10, v{vRow}")
        E.e(f"v_lshl_add_u32 v{vT}, v{vCg}, 4, v{vT}")
        E.e(f"s_lshl_b32 s{sT}, s{sTg}, 16")
        E.e(f"s_lshl_b32 s{sT2}, s{sMg}, 7")
        E.e(f"s_add_u32 s{sA}, s{sT}, s{sT2}")
        E.vmem(f"buffer_load_dwordx4 {v4(vX)}, v{vT}, {s4(SX)}, s{sA} offen", "ep")
        E.e(f"v_lshrrev_b32 v{vT+1}, 2, v{vCg}")
        E.e(f"v_lshlrev_b32 v{vT+1}, 12, v{vT+1}")
        E.e(f"v_lshrrev_b32 v{vT+2}, 4, v{vRow}")
        E.e(f"v_lshl_add_u32 v{vT+1}, v{vT+2}, 10, v{vT+1}")
        E.e(f"v_and_b32 v{vT+2}, 3, v{vCg}")
        E.e(f"v_lshl_add_u32 v{vT+1}, v{vT+2}, 8, v{vT+1}")
        E.e(f"v_and_b32 v{vT+2}, 15, v{vRow}")
        E.e(f"v_lshl_add_u32 v{vT+1}, v{vT+2}, 4, v{vT+1}")
        E.e(f"s_lshl_b32 s{sT2}, s{sMg}, 13")
        E.e(f"s_add_u32 s{sT}, s{sT}, s{sT2}")
        E.vmem(f"buffer_load_dwordx4 {v4(vXN)}, v{vT+1}, {s4(SWS)}, s{sT} offen", "ep")
    W.add(13 * 16 + 10, epi_loads)
    W.add(0, lambda E: stamp(E, 2))
    W.add(128, lambda E: stamp(E, 3))
    W.emit(E)
    stamp(E, 4)
    E.e(f"v_and_b32 v{vT+1}, 15, v{vLane}")
    E.e(f"v_mul_u32_u24 v{vT+1}, 272, v{vT+1}")
    E.e(f"v_lshrrev_b32 v{vT+2}, 4, v{vLane}")
    E.e(f"v_lshl_add_u32 v{vT+1}, v{vT+2}, 4, v{vT+1}")
    E.e(f"s_mul_i32 s{sT}, s{sW}, 17408")
    E.e(f"v_add_u32 v{vT+1}, s{sT}, v{vT+1}")
    E.e("s_nop 3")
    for mt in range(4):
        for qt in range(4):
            E.lds(f"ds_write_b128 v{vT+1}, {v4(ACC + (mt*4+qt)*4)} offset:{qt*16*272 + mt*64}", "w")
    E.e("s_waitcnt lgkmcnt(0)"); E.lg = []
    E.e("s_barrier")
    stamp(E, 5)
    E.e(f"v_mul_u32_u24 v{vT+1}, 272, v{vRow}")
    E.e(f"v_lshl_add_u32 v{vT+1}, v{vCg}, 5, v{vT+1}")
    E.e(f"v_add_u32 v{vT+2}, {4*17408}, v{vT+1}")
    for w in range(8):
        a = vT + 1 if w < 4 else vT + 2
        E.lds(f"ds_read_b128 {v4(w*8)}, v{a} offset:{(w%4)*17408}", f"r{w}")
        E.lds(f"ds_read_b128 {v4(w*8+4)}, v{a} offset:{(w%4)*17408+16}", f"r{w}")
        if w == 6: E.wait_lg("r0")
    for w in range(1, 8):
        E.wait_lg(f"r{w}")
        for k in range(8): E.e(f"v_add_f32 v{k}, v{k}, v{w*8+k}")
    E.e("s_waitcnt vmcnt(0)"); E.vm = []
    for k in range(4): E.e(f"v_cvt_pk_bf16_f32 v{8+k}, v{2*k}, v{2*k+1}")
    for k in range(4):
        E.e(f"v_lshlrev_b32 v{2*k}, 16, v{8+k}")
        E.e(f"v_and_b32 v{2*k+1}, 0xffff0000, v{8+k}")
        E.e(f"v_lshlrev_b32 v{16+2*k}, 16, v{vX+k}")
        E.e(f"v_and_b32 v{16+2*k+1}, 0xffff0000, v{vX+k}")
        E.e(f"v_lshlrev_b32 v{24+2*k}, 16, v{vXN+k}")
        E.e(f"v_and_b32 v{24+2*k+1}, 0xffff0000, v{vXN+k}")
    for k in range(8):
        E.e(f"v_add_f32 v{k}, v{k}, v{16+k}")
        E.e(f"v_add_f32 v{24+k}, v{24+k}, v{vY+k}")
    for k in range(4):
        E.e(f"v_cvt_pk_bf16_f32 v{8+k}, v{2*k}, v{2*k+1}")
        E.e(f"v_cvt_pk_bf16_f32 v{12+k}, v{24+2*k}, v{24+2*k+1}")
    for k in range(4):
        E.e(f"v_lshlrev_b32 v{2*k}, 16, v{8+k}")
        E.e(f"v_and_b32 v{2*k+1}, 0xffff0000, v{8+k}")
        E.e(f"v_lshlrev_b32 v{24+2*k}, 16, v{12+k}")
        E.e(f"v_and_b32 v{24+2*k+1}, 0xffff0000, v{12+k}")
    for k in range(8): E.e(f"v_add_f32 v{k}, v{k}, v{24+k}")
    for k in range(4): E.e(f"v_cvt_pk_bf16_f32 v{8+k}, v{2*k}, v{2*k+1}")
    E.e(f"buffer_store_dwordx4 {v4(8)}, v{vT}, {s4(SO)}, s{sA} offen")
    if PROF["on"]:
        stamp(E, 6)
        E.e("s_waitcnt vmcnt(0)")
    stamp_flush(E, 3, 8, SWS, sW, 32)
    E.e(f"{name}_end:")
    E.e("s_endpgm")
    for p in check(E.L, name): print("HAZARD", p)
    return head(name) + E.text(), kd(name, 224, 224, 96)

if __name__ == "__main__":
    t, k = gen_k3()
    print(len(t.splitlines()))
```

```python
from common import *

def wave_max_u32(E, r, t):
    for mod in ("quad_perm:[1,0,3,2]", "quad_perm:[2,3,0,1]", "row_half_mirror", "row_mirror"):
        E.e("s_nop 1")
        E.e(f"v_max_u32_dpp v{r}, v{r}, v{r} {mod} row_mask:0xf bank_mask:0xf")
    for sw in ("v_permlane16_swap_b32", "v_permlane32_swap_b32"):
        E.e(f"v_mov_b32 v{t}, v{r}")
        E.e("s_nop 1")
        E.e(f"{sw} v{r}, v{t}")
        E.e("s_nop 0")
        E.e(f"v_max_u32 v{r}, v{r}, v{t}")

def gen_kf(name="kf_kernel"):
    E = Em()
    SG, SU, SD, SWS = 20, 24, 28, 32
    sW, sT, sT2, sL = 36, 37, 38, 39
    vLane, vL16, vT = 100, 101, 102
    E.e(f"s_cmp_ge_u32 s2, {NP}")
    E.e(f"s_cbranch_scc1 {name}_end")
    stamp_init(E)
    E.e("s_load_dwordx4 s[4:7], s[0:1], 64")
    E.e("s_load_dwordx2 s[8:9], s[0:1], 80")
    E.e("s_load_dwordx2 s[10:11], s[0:1], 104")
    E.e(f"v_and_b32 v{vLane}, 63, v0")
    E.e(f"v_lshrrev_b32 v{vT}, 6, v0")
    E.e(f"v_lshlrev_b32 v{vL16}, 4, v{vLane}")
    E.e(f"v_readfirstlane_b32 s{sW}, v{vT}")
    E.e("s_waitcnt lgkmcnt(0)")
    srd(E, SG, 4, 512 * 2752); srd(E, SU, 6, 512 * 2752); srd(E, SD, 8, 1376 * 1024); srd(E, SWS, 10, WS_SIZE)
    K = 0
    E.e(f"s_lshl_b32 s{sT}, s{sW}, 11")
    E.e(f"s_add_u32 s{sT}, s{sT}, {hex(WS_RS)}")
    E.vmem(f"buffer_load_dwordx4 {v4(K)}, v{vL16}, {s4(SWS)}, s{sT} offen", "key")
    E.vmem(f"buffer_load_dwordx4 {v4(K+4)}, v{vL16}, {s4(SWS)}, s{sT} offen offset:1024", "key")
    E.e(f"s_mul_i32 s{sL}, s{sW}, 24576")
    E.e(f"v_lshrrev_b32 v{vT}, 2, v{vLane}")
    E.e(f"v_mul_u32_u24 v{vT}, 2752, v{vT}")
    E.e(f"v_and_b32 v{vT+1}, 3, v{vLane}")
    E.e(f"v_lshl_add_u32 v{vT}, v{vT+1}, 4, v{vT}")
    E.e(f"s_mul_i32 s{sT}, s{sW}, {128*2752}")
    E.e(f"s_lshl_b32 s{sT2}, s2, 6")
    E.e(f"s_add_u32 s{sT}, s{sT}, s{sT2}")
    for mat, S in enumerate((SG, SU)):
        for i in range(8):
            E.e(f"s_add_u32 m0, s{sL}, {mat*8192 + i*1024}")
            E.e(f"s_add_u32 s{sT2}, s{sT}, {i*16*2752}")
            E.vmem(f"buffer_load_dwordx4 v{vT}, {s4(S)}, s{sT2} offen lds", "w")
    E.e(f"v_lshrrev_b32 v{vT}, 4, v{vLane}")
    E.e(f"v_lshlrev_b32 v{vT}, 10, v{vT}")
    E.e(f"v_and_b32 v{vT+1}, 15, v{vLane}")
    E.e(f"v_lshl_add_u32 v{vT}, v{vT+1}, 4, v{vT}")
    E.e(f"s_lshl_b32 s{sT}, s2, 15")
    E.e(f"s_lshl_b32 s{sT2}, s{sW}, 8")
    E.e(f"s_add_u32 s{sT}, s{sT}, s{sT2}")
    for i in range(8):
        E.e(f"s_add_u32 m0, s{sL}, {16384 + i*1024}")
        E.e(f"s_add_u32 s{sT2}, s{sT}, {i*4096}")
        E.vmem(f"buffer_load_dwordx4 v{vT}, {s4(SD)}, s{sT2} offen lds", "w")
    E.wait_vm("key")
    M, TT, C, PREV = 8, 9, 10, 11
    D = 12
    E.e(f"v_mov_b32 v{PREV}, 0")
    E.e(f"v_mov_b32 v{C}, 0")
    for rnd in range(8):
        for k in range(8): E.e(f"v_sub_u32 v{D+k}, v{K+k}, v{PREV}")
        E.e(f"v_max3_u32 v{M}, v{D}, v{D+1}, v{D+2}")
        E.e(f"v_max3_u32 v{M}, v{M}, v{D+3}, v{D+4}")
        E.e(f"v_max3_u32 v{M}, v{M}, v{D+5}, v{D+6}")
        E.e(f"v_max_u32 v{M}, v{M}, v{D+7}")
        wave_max_u32(E, M, TT)
        E.e(f"v_add_u32 v{PREV}, v{PREV}, v{M}")
        E.e(f"v_cmp_eq_u32 vcc, {rnd}, v{vLane}")
        E.e("s_nop 1")
        E.e(f"v_cndmask_b32 v{C}, v{C}, v{PREV}, vcc")
    LC = 98304
    E.e(f"s_lshl_b32 s{sT}, s{sW}, 5")
    E.e(f"v_lshl_add_u32 v{vT}, v{vLane}, 2, s{sT}")
    E.e(f"v_add_u32 v{vT}, {LC}, v{vT}")
    E.e("s_mov_b64 exec, 0xff")
    E.e(f"ds_write_b32 v{vT}, v{C}")
    E.e("s_mov_b64 exec, -1")
    E.e("s_waitcnt lgkmcnt(0)")
    E.e("s_barrier")
    E.e(f"v_and_b32 v{vT}, 31, v{vLane}")
    E.e(f"v_lshlrev_b32 v{vT}, 2, v{vT}")
    E.e(f"v_add_u32 v{vT}, {LC}, v{vT}")
    E.e(f"ds_read_b32 v{C}, v{vT}")
    E.e(f"v_mov_b32 v{M}, 0")
    E.e("s_waitcnt lgkmcnt(0)")
    for k in range(32):
        E.e(f"v_readlane_b32 s{sT}, v{C}, {k}")
        E.e("s_nop 1")
        E.e(f"v_cmp_gt_u32 vcc, s{sT}, v{C}")
        E.e("s_nop 1")
        E.e(f"v_addc_co_u32 v{M}, vcc, 0, v{M}, vcc")
    E.e(f"s_lshl_b32 s{sT}, s{sW}, 5")
    E.e(f"s_add_u32 s{sT}, s{sT}, {LC + 128}")
    E.e(f"v_lshl_add_u32 v{vT}, v{M}, 2, s{sT}")
    E.e(f"v_cmp_gt_u32 vcc, 8, v{M}")
    E.e("s_and_saveexec_b64 s[40:41], vcc")
    E.e(f"ds_write_b32 v{vT}, v{C}")
    E.e("s_mov_b64 exec, s[40:41]")
    E.e(f"v_and_b32 v{vT}, 7, v{vLane}")
    E.e(f"v_lshl_add_u32 v{vT}, v{vT}, 2, s{sT}")
    E.e("s_waitcnt lgkmcnt(0)")
    E.e(f"ds_read_b32 v{C}, v{vT}")
    E.e("s_waitcnt lgkmcnt(0)")
    E.e(f"s_or_b32 s{sT}, s2, s{sW}")
    E.e(f"s_cmp_lg_u32 s{sT}, 0")
    E.e(f"s_cbranch_scc1 {name}_nopub")
    E.e(f"v_lshlrev_b32 v{vT}, 2, v{vLane}")
    E.e(f"s_mov_b32 s{sT}, {hex(WS_IDX)}")
    E.e("s_mov_b64 exec, 0xff")
    E.e(f"buffer_store_dword v{C}, v{vT}, {s4(SWS)}, s{sT} offen")
    E.e("s_mov_b64 exec, -1")
    E.e(f"{name}_nopub:")
    E.e(f"v_and_b32 v{M}, 0xffff, v{C}")
    E.e(f"v_sub_u32 v{M}, 2047, v{M}")
    E.e(f"v_lshrrev_b32 v{vT}, 6, v{M}")
    E.e(f"v_lshlrev_b32 v{vT}, 16, v{vT}")
    E.e(f"v_bfe_u32 v{vT+1}, v{M}, 4, 2")
    E.e(f"v_lshl_add_u32 v{vT}, v{vT+1}, 10, v{vT}")
    E.e(f"v_and_b32 v{vT+1}, 15, v{M}")
    E.e(f"v_lshl_add_u32 v{vT}, v{vT+1}, 4, v{vT}")
    E.e(f"v_lshrrev_b32 v{vT+1}, 4, v{vLane}")
    E.e(f"v_lshl_add_u32 v{vT}, v{vT+1}, 8, v{vT}")
    XB = 20
    E.e(f"s_lshl_b32 s{sT}, s{sW}, 14")
    for k in range(4):
        E.e(f"s_add_u32 s{sT2}, s{sT}, {k*4096}")
        E.e(f"buffer_load_dwordx4 {v4(XB+4*k)}, v{vT}, {s4(SWS)}, s{sT2} offen")
    E.e(f"v_lshrrev_b32 v{vT}, 4, v{vLane}")
    E.e(f"v_bfe_u32 v{vT+1}, v{vLane}, 2, 2")
    E.e(f"v_lshl_add_u32 v{vT}, v{vT}, 3, v{vT+1}")
    E.e(f"v_lshlrev_b32 v{vT}, 6, v{vT}")
    E.e(f"v_and_b32 v{vT+1}, 3, v{vLane}")
    E.e(f"v_lshl_add_u32 v{vT}, v{vT+1}, 3, v{vT}")
    E.e(f"v_add_u32 v{vT}, s{sL}, v{vT}")
    E.e("s_waitcnt vmcnt(0)")
    AF = 36
    ACC = 52
    for k in range(4):
        for mat in range(2):
            for ft in range(2):
                r = AF + (mat * 2 + ft) * 4
                o = mat * 8192 + k * 2048 + ft * 32
                E.e(f"ds_read_b64_tr_b16 {v2(r)}, v{vT} offset:{o}")
                E.e(f"ds_read_b64_tr_b16 {v2(r+2)}, v{vT} offset:{o+256}")
        E.e("s_waitcnt lgkmcnt(0)")
        for q in range(4):
            a = v4(ACC + 4 * q)
            E.e(f"{MFMA} {a}, {v4(AF+4*q)}, {v4(XB+4*k)}, {'0' if k == 0 else a}")
    E.e("s_nop 7")
    LR = 99328
    E.e(f"s_lshl_b32 s{sT}, s{sW}, 12")
    E.e(f"s_add_u32 s{sT}, s{sT}, {LR}")
    E.e(f"v_add_u32 v{vT+1}, s{sT}, v{vL16}")
    for q in range(4): E.e(f"ds_write_b128 v{vT+1}, {v4(ACC+4*q)} offset:{q*1024}")
    E.e("s_waitcnt lgkmcnt(0)")
    E.e("s_barrier")
    E.e(f"v_add_u32 v{vT+1}, {LR}, v{vL16}")
    R = 0
    for w in range(4):
        for q in range(4): E.e(f"ds_read_b128 {v4(R + (w*4+q)*4)}, v{vT+1} offset:{w*4096 + q*1024}")
        if w == 1: E.e("s_waitcnt lgkmcnt(0)")
    E.e("s_waitcnt lgkmcnt(0)")
    for w in range(1, 4):
        for k in range(16): E.e(f"v_add_f32 v{k}, v{k}, v{w*16+k}")
    for k in range(8): E.e(f"v_cvt_pk_bf16_f32 v{16+k}, v{k}, v{8+k}")
    for k in range(8):
        E.e(f"v_lshlrev_b32 v{k}, 16, v{16+k}")
        E.e(f"v_and_b32 v{8+k}, 0xffff0000, v{16+k}")
    for k in range(8): E.e(f"v_mul_f32 v{16+k}, 0xbfb8aa3b, v{k}")
    for k in range(8): E.e(f"v_exp_f32 v{16+k}, v{16+k}")
    for k in range(8): E.e(f"v_add_f32 v{16+k}, 1.0, v{16+k}")
    for k in range(8): E.e(f"v_rcp_f32 v{16+k}, v{16+k}")
    for k in range(8): E.e(f"v_mul_f32 v{k}, v{k}, v{16+k}")
    for k in range(4): E.e(f"v_cvt_pk_bf16_f32 v{16+k}, v{2*k}, v{2*k+1}")
    for k in range(4):
        E.e(f"v_lshlrev_b32 v{2*k}, 16, v{16+k}")
        E.e(f"v_and_b32 v{2*k+1}, 0xffff0000, v{16+k}")
    for k in range(8): E.e(f"v_mul_f32 v{k}, v{k}, v{8+k}")
    HB = 16
    for k in range(4): E.e(f"v_cvt_pk_bf16_f32 v{HB+k}, v{2*k}, v{2*k+1}")
    E.e(f"v_lshrrev_b32 v{vT}, 2, v{vLane}")
    E.e(f"v_lshlrev_b32 v{vT}, 8, v{vT}")
    E.e(f"v_and_b32 v{vT+1}, 3, v{vLane}")
    E.e(f"v_lshl_add_u32 v{vT}, v{vT+1}, 3, v{vT}")
    E.e(f"v_add_u32 v{vT}, s{sL}, v{vT}")
    DF = 20
    for mt in range(8):
        E.e(f"ds_read_b64_tr_b16 {v2(DF+4*mt)}, v{vT} offset:{16384 + mt*32}")
        E.e(f"ds_read_b64_tr_b16 {v2(DF+4*mt+2)}, v{vT} offset:{16384 + mt*32 + 4096}")
        if mt == 3: E.e("s_waitcnt lgkmcnt(0)")
    E.e("s_waitcnt lgkmcnt(0)")
    Y = 52
    for mt in range(8): E.e(f"{MFMA} {v4(Y+4*mt)}, {v4(DF+4*mt)}, {v4(HB)}, 0")
    E.e(f"v_and_b32 v{vT}, 15, v{vLane}")
    E.e(f"v_cmp_gt_u32 vcc, 8, v{vT}")
    E.e(f"v_lshlrev_b32 v{vT}, 11, v{vT}")
    E.e(f"v_lshrrev_b32 v{vT+1}, 4, v{vLane}")
    E.e(f"v_lshl_add_u32 v{vT}, v{vT+1}, 4, v{vT}")
    E.e(f"s_lshl_b32 s{sT}, s2, 14")
    E.e(f"s_lshl_b32 s{sT2}, s{sW}, 9")
    E.e(f"s_add_u32 s{sT}, s{sT}, s{sT2}")
    E.e(f"s_add_u32 s{sT}, s{sT}, {hex(WS_YP)}")
    E.e("s_and_saveexec_b64 s[40:41], vcc")
    for mt in range(8): E.e(f"buffer_store_dwordx4 {v4(Y+4*mt)}, v{vT}, {s4(SWS)}, s{sT} offen offset:{mt*64}")
    if PROF["on"]:
        E.e("s_waitcnt vmcnt(0)")
        E.e("s_mov_b64 exec, -1")
    stamp_flush(E, 1, 4, SWS, sW, 0)
    E.e(f"{name}_end:")
    E.e("s_endpgm")
    for p in check(E.L, name): print("HAZARD", p)
    return head(name) + E.text(), kd(name, 112, 112, 96)

if __name__ == "__main__":
    t, k = gen_kf()
    print(len(t.splitlines()))
```

```python
import sys
from common import *
from k1 import gen_k1
from k2 import gen_k2
from k3 import gen_k3
from kf import gen_kf

NAME = "parallel_sum__compressed_kv_cla__moe_arch_mod__prompt"
def build(out, **kw):
    ref = open(f"cdna_kernels/{NAME}.s.ref").read().splitlines()
    hdr = [l for l in ref if l.startswith(";") and "@launch" not in l and "Override launch" not in l and "grid=ceil" not in l]
    hdr = hdr[:15]
    ks = [gen_k1(stflag=kw.get("st1", " sc1"), **kw.get("k1", {})), gen_k2(stflag=kw.get("st2", " sc1"), **kw.get("k2", {})), gen_k3(**kw.get("k3", {}))]
    L = "\n".join(hdr) + "\n"
    L += "; @launch kernel=k1_kernel grid=(256,1,1) block=(256,1,1) lds=163840\n"
    L += "; @launch kernel=k2_kernel grid=(256,1,1) block=(256,1,1) lds=163840\n"
    L += "; @launch kernel=k3_kernel grid=(256,1,1) block=(512,1,1) lds=139264\n"
    L += '.amdgcn_target "amdgcn-amd-amdhsa--gfx950"\n'
    for t, k in ks: L += t
    L += 'code_end:\n    s_endpgm\n'
    for t, k in ks: L += k
    open(out, "w").write(L)
if __name__ == "__main__":
    build(f"cdna_kernels/{NAME}.s")
    build("cur.s")
    build("slow.s", k2=dict(lthr="0x3f000000"))
    PROF["on"] = True
    build("prof.s")
    PROF["op"] = "s_memtime"
    build("profc.s")
```

```python
import re

def vr(i, n=1, p="v"):
    return f"{p}{i}" if n == 1 else f"{p}[{i}:{i+n-1}]"
def v4(i): return vr(i, 4, "v")
def a4(i): return vr(i, 4, "a")
def v2(i): return vr(i, 2, "v")
def s4(i): return f"s[{i}:{i+3}]"
def s2(i): return f"s[{i}:{i+1}]"

MFMA = "v_mfma_f32_16x16x32_bf16"

class Em:
    def __init__(self):
        self.L = []
        self.vm = []
        self.lg = []
    def e(self, s):
        for line in s.split("\n"):
            line = line.strip()
            if line:
                self.L.append(line)
    def vmem(self, s, tag=None):
        self.e(s); self.vm.append(tag)
    def lds(self, s, tag=None):
        self.e(s); self.lg.append(tag)
    def _cnt(self, q, tags):
        last = -1
        for i, t in enumerate(q):
            if t in tags: last = i
        return len(q) - 1 - last, last
    def wait_vm(self, *tags, emit=True):
        n, last = self._cnt(self.vm, tags)
        if last < 0: return None
        self.vm = self.vm[last + 1:]
        assert n <= 63, n
        s = f"s_waitcnt vmcnt({n})"
        if emit: self.e(s)
        return s
    def wait_lg(self, *tags, emit=True):
        n, last = self._cnt(self.lg, tags)
        if last < 0: return None
        self.lg = self.lg[last + 1:]
        if n > 15: n = 15
        s = f"s_waitcnt lgkmcnt({n})"
        if emit: self.e(s)
        return s
    def wait_all(self):
        self.e("s_waitcnt vmcnt(0) lgkmcnt(0)"); self.vm = []; self.lg = []
    def text(self):
        out = []
        for l in self.L:
            if l.endswith(":") or l.startswith("."):
                out.append(l)
            else:
                out.append("    " + l)
        return "\n".join(out) + "\n"

_reg = re.compile(r"^(-|abs\()?([vas])(\d+)\)?$")
_rng = re.compile(r"^(-|abs\()?([vas])\[(\d+):(\d+)\]\)?$")
def regs(op):
    op = op.strip()
    m = _reg.match(op)
    if m: return {(m.group(2), int(m.group(3)))}
    m = _rng.match(op)
    if m: return {(m.group(2), i) for i in range(int(m.group(3)), int(m.group(4)) + 1)}
    if op == "vcc": return {("s", 106), ("s", 107)}
    if op == "vcc_lo": return {("s", 106)}
    if op == "vcc_hi": return {("s", 107)}
    if op == "m0": return {("s", 124)}
    if op == "exec": return {("s", 126), ("s", 127)}
    return set()

TRANS = ("v_exp_f32", "v_log_f32", "v_rcp_f32", "v_rsq_f32", "v_sqrt_f32", "v_sin_f32", "v_cos_f32")

def parse(line):
    line = line.split(";")[0].strip()
    if not line or line.endswith(":") or line.startswith("."): return None
    parts = line.split(None, 1)
    mn = parts[0]
    ops = []
    if len(parts) > 1:
        cur = ""; d = 0
        for ch in parts[1]:
            if ch == "[": d += 1
            if ch == "]": d -= 1
            if ch == "," and d == 0:
                ops.append(cur.strip()); cur = ""
            else: cur += ch
        ops.append(cur.strip())
    mods = ""
    if ops:
        sp = ops[-1].split(None, 1)
        if len(sp) > 1: ops[-1] = sp[0]; mods = sp[1]
    I = dict(mn=mn, ops=ops, mods=mods, line=line, w=set(), r=set(), cls="other")
    R = [regs(o) for o in ops]
    if mn.startswith("v_mfma"):
        I["cls"] = "mfma"; I["w"] = R[0]; I["ra"] = R[1] | R[2]; I["rc"] = R[3]; I["r"] = R[1] | R[2] | R[3]
        I["passes"] = 4 if "16x16x" in mn else 8
    elif mn.startswith("v_"):
        I["cls"] = "valu"
        if mn.startswith("v_cmp"):
            I["w"] = R[0]; I["r"] = set().union(*R[1:])
        elif mn.startswith("v_permlane") and "swap" in mn:
            I["w"] = R[0] | R[1]; I["r"] = R[0] | R[1]
        elif mn.startswith(("v_add_co", "v_sub_co", "v_addc_co", "v_subb_co", "v_div_scale", "v_mad_u64")):
            I["w"] = R[0] | R[1]; I["r"] = set().union(*R[2:])
        else:
            I["w"] = R[0]; I["r"] = set().union(*R[1:]) if len(R) > 1 else set()
            if mn.startswith(("v_fmac", "v_dot2c", "v_writelane")) or "dpp" in mn or "row_" in mods or "quad_perm" in mods:
                I["r"] |= R[0]
            if mn.startswith("v_cndmask") and len(ops) == 3: I["r"] |= regs("vcc")
        I["trans"] = mn.replace("_e32", "").replace("_e64", "") in TRANS
        I["dpp"] = ("row_" in mods or "quad_perm" in mods or "dpp" in mn)
    elif mn.startswith(("buffer_", "global_")):
        I["cls"] = "vmem"
        if "store" in mn or "atomic" in mn:
            I["r"] = set().union(*R); I["sdata"] = R[0] if mn.startswith("buffer_") else R[1]
            I["wide"] = ("x4" in mn or "x3" in mn)
        elif "lds" in mods.split() or "_lds_" in mn:
            I["r"] = set().union(*R) | regs("m0"); I["dma"] = True
        else:
            I["w"] = R[0]; I["r"] = set().union(*R[1:])
    elif mn.startswith("ds_"):
        I["cls"] = "ds"
        if "write" in mn:
            I["r"] = set().union(*R)
        else:
            I["w"] = R[0]; I["r"] = set().union(*R[1:])
    elif mn.startswith("s_"):
        I["cls"] = "salu"
        if mn.startswith(("s_cmp", "s_cbranch", "s_branch", "s_waitcnt", "s_barrier", "s_nop", "s_endpgm", "s_setprio", "s_bitcmp", "s_sleep")):
            I["r"] = set().union(*R) if R else set()
        else:
            I["w"] = R[0] if R else set(); I["r"] = set().union(*R[1:]) if len(R) > 1 else set()
            if "saveexec" in mn: I["w"] |= regs("exec")
    return I

def check(lines, name=""):
    ins = [p for p in (parse(l) for l in lines) if p]
    pos = []; t = 0
    for I in ins:
        pos.append(t)
        if I["mn"] == "s_nop": t += int(I["ops"][0], 0) + 1
        else: t += 1
    probs = []
    isv = lambda S: {x for x in S if x[0] in "va"}
    iss = lambda S: {x for x in S if x[0] == "s"}
    for j, J in enumerate(ins):
        for i in range(j - 1, max(-1, j - 24), -1):
            I = ins[i]
            d = pos[j] - pos[i] - 1
            if I["mn"] == "s_nop": d = d
            need = 0; why = ""
            if I["cls"] == "valu":
                wv = isv(I["w"]); ws = iss(I["w"])
                if J["cls"] == "mfma" and wv & J["r"]: need, why = 2, "valu->mfma"
                if J["cls"] == "valu":
                    if J.get("dpp") and wv & J["r"]: need, why = max(need, 2), "valu->dpp"
                    if J["mn"].startswith("v_permlane") and wv & J["r"]: need, why = max(need, 2), "valu->permlane"
                    if J["mn"].startswith(("v_readlane", "v_readfirstlane")) and wv & J["r"]: need, why = max(need, 1), "valu->readlane"
                    if I.get("trans") and not J.get("trans") and wv & J["r"]: need, why = max(need, 1), "trans->valu"
                    if ws & J["r"]:
                        if J["mn"].startswith(("v_readlane", "v_writelane")): need, why = max(need, 4), "valu sgpr->lane sel"
                        else: need, why = max(need, 2), "valu sgpr->valu"
                if J["cls"] == "vmem" and ws & J["r"]: need, why = max(need, 5), "valu sgpr->vmem"
                if I.get("trans") and J["cls"] in ("vmem", "ds", "mfma") and wv & J["r"]: need, why = max(need, 2), "trans->other"
            if I["cls"] == "mfma":
                p = I["passes"]
                tab_rd = {4: 8, 8: 12}[p]; tab_c = {4: 6, 8: 10}[p]; tab_war = {4: 3, 8: 7}[p]
                if J["cls"] == "mfma":
                    if I["w"] & J["ra"]: need, why = max(need, tab_rd), "mfma D->AB"
                    if I["w"] & J["rc"] and I["w"] != J["rc"]: need, why = max(need, tab_c), "mfma D->C overlap"
                    if I["w"] & J["w"] and I["w"] != J["rc"]: need, why = max(need, tab_rd), "mfma WAW (conservative)"
                elif J["cls"] in ("valu", "vmem", "ds"):
                    if I["w"] & (J["r"] | J["w"]): need, why = max(need, tab_rd), "mfma D->valu/mem"
                    if J["cls"] == "valu" and I["rc"] & J["w"]: need, why = max(need, tab_war), "mfma C WAR"
            if I["cls"] == "vmem" and I.get("wide") and (I["sdata"] & J["w"]):
                need, why = max(need, 2), "store data WAR"
            if I["cls"] == "salu" and ("s", 124) in I["w"] and J.get("dma"): need, why = max(need, 1), "m0->dma"
            if need > d:
                probs.append(f"{name}: {why}: need {need} have {d}: [{I['line']}] -> [{J['line']}]")
    return probs

def kd(name, vgpr, accum, sgpr=102):
    return f""".section .rodata,"a"
.p2align 6
.amdhsa_kernel {name}
  .amdhsa_next_free_vgpr {vgpr}
  .amdhsa_next_free_sgpr {sgpr}
  .amdhsa_accum_offset {accum}
  .amdhsa_group_segment_fixed_size 0
  .amdhsa_kernarg_size 112
  .amdhsa_user_sgpr_count 2
  .amdhsa_user_sgpr_kernarg_segment_ptr 1
  .amdhsa_system_sgpr_workgroup_id_x 1
  .amdhsa_float_denorm_mode_32 3
  .amdhsa_float_denorm_mode_16_64 3
.end_amdhsa_kernel
"""

def srd(E, d, base, size):
    E.e(f"s_mov_b32 s{d}, s{base}")
    E.e(f"s_and_b32 s{d+1}, s{base+1}, 0xffff")
    E.e(f"s_mov_b32 s{d+2}, {hex(size)}")
    E.e(f"s_mov_b32 s{d+3}, 0x20000")

class Op:
    def __init__(self, kind, fn, cost=None):
        self.kind = kind; self.fn = fn
        self.cost = cost if cost is not None else (0 if kind == "s" else 1)
    def __call__(self, E): self.fn(E)

def classify(item):
    if isinstance(item, Op): return item.kind, item.cost
    if callable(item): return "m", 1
    if item.startswith("s_"): return "s", 0
    if item.startswith(("ds_", "buffer_", "global_")): return "m", 1
    mn = item.split()[0]
    return "v", (2 if mn in TRANS else 1)

class Weave:
    def __init__(self):
        self.bb = []; self.post = []; self.prev = []; self.load = []; self.sload = []
    def mf(self, s):
        self.bb.append(s); self.post.append([]); self.prev.append([]); self.load.append(0); self.sload.append(0)
        return len(self.bb) - 1
    def add(self, slot, item, pri=None):
        kind, cost = classify(item)
        if pri is None: pri = {"s": 0, "m": 1, "v": 2}[kind]
        self.post[slot].append((pri, item))
        self.load[slot] += cost
        if kind == "s": self.sload[slot] += 1
    def first(self, slot, item, pri=-1): self.post[slot].append((pri, item))
    def pre(self, slot, item): self.prev[slot].append(item)
    def chain(self, ops, g, end=None, cap=2, step=0):
        end = len(self.bb) if end is None else end
        rank = {"s": 0, "m": 1, "v": 2}
        last = -1
        for k, op in enumerate(ops):
            if op is None: g += 2; last = -1; continue
            if isinstance(op, int): g += op; last = -1; continue
            kind, cost = classify(op)
            while g < end:
                over = self.load[g] + cost + max(0, self.sload[g] + (kind == "s") - 1) > cap
                if over or rank[kind] < last: g += 1; last = -1
                else: break
            if g >= end: return g, [o for o in ops[k:]]
            self.add(g, op); last = rank[kind]
            if step: g += step; last = -1
        return g + 1, []
    def emit(self, E):
        for i, m in enumerate(self.bb):
            for it in self.prev[i]:
                it(E) if callable(it) else E.e(it)
            E.e(m)
            for pri, it in sorted(self.post[i], key=lambda x: x[0]):
                it(E) if callable(it) else E.e(it)

def put(E, L):
    for x in L:
        if x is None: E.e("s_nop 1")
        elif isinstance(x, int): pass
        elif callable(x): x(E)
        else: E.e(x)
```

```python
from asmlib import *

WS_XN   = 0x0000000
WS_RS   = 0x0200000
WS_IDX  = 0x0208000
WS_UPD  = 0x0210000
WS_YP   = 0x0220000
NP      = 86
WS_GUF  = 0x0800000
WS_WOF  = 0x0400000
WS_K    = 0x1000000
WS_V    = 0x2000000
WS_CTX  = 0x3000000
WS_SIZE = 0x10000000

import struct, math
SCALE_BITS = struct.unpack("<I", struct.pack("<f", math.log2(math.e) / math.sqrt(128.0)))[0]

class Stream:
    def __init__(self, W, lead, age=10, maxper=1):
        self.W = W; self.lead = lead; self.age = age; self.maxper = maxper
        self.reads = []
        self.latest = {}
    def read(self, tag, texts, first_use, earliest=-10**9, lead=None, latest=10**9):
        self.reads.append((tag, texts, first_use, earliest, lead if lead is not None else self.lead))
        self.latest[tag] = latest
    def place(self, E, load=None):
        W = self.W
        n = len(W.bb)
        cnt = [0] * n
        cur = -10**9
        issue = {}
        for tag, texts, fu, ea, lead in self.reads:
            for k, tx in enumerate(texts):
                s = max(fu - lead + k, ea, cur)
                if s >= 0:
                    while cnt[s] >= self.maxper and s < fu - 3: s += 1
                    assert s < fu, (tag, s, fu)
                    cnt[s] += 1
                    W.add(s, (lambda tx, tag: (lambda E: E.lds(tx, tag)))(tx, tag))
                else:
                    E.lds(tx, tag)
                cur = s
                issue[tag] = s
                assert s < self.latest[tag], (tag, s, self.latest[tag])
        order = [r[0] for r in self.reads]
        covered = set()
        for idx, (tag, texts, fu, ea, lead) in sorted(enumerate(self.reads), key=lambda x: (x[1][2], x[0])):
            if tag in covered: continue
            last = idx
            for k in range(idx + 1, len(order)):
                if issue[order[k]] <= fu - self.age: last = k
                else: break
            for k in range(0, last + 1): covered.add(order[k])
            f = (lambda t: (lambda E: E.wait_lg(t)))(order[last])
            if fu >= 1 and issue[order[last]] < fu - 1: W.add(fu - 1, Op('s', f))
            else: W.pre(fu, f)

def wave_sum2(E, regs, tmp):
    for mod in ("quad_perm:[1,0,3,2]", "quad_perm:[2,3,0,1]", "row_half_mirror", "row_mirror"):
        if len(regs) < 3: E.e(f"s_nop {2 - len(regs)}" if len(regs) < 3 else "")
        for r in regs:
            E.e(f"v_add_f32_dpp v{r}, v{r}, v{r} {mod} row_mask:0xf bank_mask:0xf")
    for sw in ("v_permlane16_swap_b32", "v_permlane32_swap_b32"):
        for r, t in zip(regs, tmp):
            E.e(f"v_mov_b32 v{t}, v{r}")
        E.e("s_nop 1")
        for r, t in zip(regs, tmp):
            E.e(f"{sw} v{r}, v{t}")
        E.e("s_nop 0")
        for r, t in zip(regs, tmp):
            E.e(f"v_add_f32 v{r}, v{r}, v{t}")

def head(name):
    return f".text\n.globl {name}\n.p2align 8\n.type {name},@function\n{name}:\n"

WS_PROF = 0x8000000
PROF = {"on": False}
def stamp(E, i):
    if not PROF["on"]: return
    E.e(f"{PROF.get('op', 's_memrealtime')} s[{64+2*i}:{65+2*i}]")
    E.e("s_waitcnt lgkmcnt(0)"); E.lg = []
def stamp_init(E):
    if not PROF["on"]: return
    for i in range(64, 96): E.e(f"s_mov_b32 s{i}, 0")
    if "dbg" in PROF: E.e("s_load_dwordx2 s[92:93], s[0:1], 96")
    stamp(E, 0)
def stamp_flush(E, kid, nw, SWS, sW, vtmp):
    if not PROF["on"]: return
    stamp(E, 15)
    E.e("s_nop 7")
    E.e("s_nop 7")
    for i in range(16): E.e(f"v_mov_b32 v{vtmp+i}, s{64+2*i}")
    E.e(f"v_mov_b32 v{vtmp+16}, 0")
    E.e(f"s_mul_i32 s64, s2, {nw}")
    E.e(f"s_add_u32 s64, s64, s{sW}")
    E.e(f"s_lshl_b32 s64, s64, 6")
    E.e(f"s_add_u32 s64, s64, {hex(WS_PROF + kid * 0x40000)}")
    E.e("s_mov_b64 exec, 1")
    for q in range(4): E.e(f"buffer_store_dwordx4 {v4(vtmp+4*q)}, v{vtmp+16}, {s4(SWS)}, s64 offen offset:{q*16}")
    if PROF.get("dbg") == kid:
        n = PROF["n"] = PROF.get("n", 0) + 1
        E.e(f"s_cmp_lg_u32 s2, {PROF.get('blk', 100)}")
        E.e(f"s_cbranch_scc1 dbgskip{n}")
        E.e(f"s_cmp_lg_u32 s{sW}, 0")
        E.e(f"s_cbranch_scc1 dbgskip{n}")
        E.e("s_mov_b32 s68, s92"); E.e("s_and_b32 s69, s93, 0xffff"); E.e("s_mov_b32 s70, 256"); E.e("s_mov_b32 s71, 0x20000")
        for i in range(1, 16): E.e(f"v_sub_u32 v{vtmp+i}, v{vtmp+i}, v{vtmp}")
        for q in range(4): E.e(f"buffer_store_dwordx4 {v4(vtmp+4*q)}, v{vtmp+16}, s[68:71], 0 offen offset:{q*16}")
        E.e(f"dbgskip{n}:")

def wsum_ops(regs, tmp):
    L = []
    for mod in ("quad_perm:[1,0,3,2]", "quad_perm:[2,3,0,1]", "row_half_mirror", "row_mirror"):
        L.append(None)
        L += [f"v_add_f32_dpp v{r}, v{r}, v{r} {mod} row_mask:0xf bank_mask:0xf" for r in regs]
    for sw in ("v_permlane16_swap_b32", "v_permlane32_swap_b32"):
        L += [f"v_mov_b32 v{t}, v{r}" for r, t in zip(regs, tmp)]
        L.append(None)
        L += [f"{sw} v{r}, v{t}" for r, t in zip(regs, tmp)]
        L += [f"v_add_f32 v{r}, v{r}, v{t}" for r, t in zip(regs, tmp)]
    return L
```

```python
from common import *

def gen_k1(name="k1_kernel", stflag="", rot=1, touch=0, codepf=1, tflag="", wqt=1, wof=1, sflag="", tlb=0):
    E = Em()
    SCK, SWK, SWV, SWS, SA = 28, 32, 36, 40, 44
    sW, sH, sRT = 48, 49, 50
    sCK0, sWo, sM, sT, sT2, sKst, sVst = 51, 52, 53, 54, 55, 56, 57
    sCKl, sWl, sUl = 58, 59, 60
    sWv, sU1, sSc = 61, 62, 63
    sRot, sJ, sU2, sU3, sU4, sU5 = 96, 97, 98, 99, 100, 101
    sKt, sL1, sL2, sL3, sL4 = 26, 27, 3, 0, 1
    ACC1, ACC2, WF = 0, 128, 192
    vW = 224
    vA0, vA1 = 236, 237
    vCK = 238
    vWD = 242
    vL16, vLane = 246, 247
    vT = 248
    NWF = 8
    KT = lambda c, a: ACC1 + (c * 4 + a) * 4
    CF = lambda a, kb: (kb * 4 + a) * 4
    L_W = lambda slot: slot * 16384
    L_SP = 49152
    L_CK = 65536

    E.e("s_cmp_ge_u32 s2, 256")
    E.e(f"s_cbranch_scc1 {name}_end")
    stamp_init(E)
    E.e("s_load_dwordx4 s[4:7], s[0:1], 0")
    E.e("s_load_dwordx8 s[8:15], s[0:1], 16")
    E.e("s_load_dwordx8 s[16:23], s[0:1], 56")
    E.e("s_load_dwordx2 s[24:25], s[0:1], 104")
    E.e("s_load_dwordx2 s[26:27], s[0:1], 88")
    E.e(f"v_and_b32 v{vLane}, 63, v0")
    E.e(f"v_lshrrev_b32 v{vT}, 6, v0")
    E.e(f"v_lshlrev_b32 v{vL16}, 4, v{vLane}")
    E.e(f"v_readfirstlane_b32 s{sW}, v{vT}")
    E.e(f"s_and_b32 s{sRot}, s2, 7")
    E.e(f"s_lshr_b32 s{sT2}, s2, 3")
    E.e(f"s_and_b32 s{sRT}, s{sT2}, 7")
    E.e(f"s_lshr_b32 s{sT2}, s{sT2}, 3")
    E.e(f"s_lshl_b32 s{sH}, s{sRot}, 2")
    E.e(f"s_add_u32 s{sH}, s{sH}, s{sT2}")
    if not rot: E.e(f"s_mov_b32 s{sRot}, 0")
    E.e(f"v_lshrrev_b32 v{vT}, 3, v{vLane}")
    E.e(f"v_lshlrev_b32 v{vT}, 10, v{vT}")
    E.e(f"v_and_b32 v{vT+1}, 7, v{vLane}")
    E.e(f"v_lshrrev_b32 v{vT+2}, 4, v{vLane}")
    E.e(f"v_xor_b32 v{vT+1}, v{vT+1}, v{vT+2}")
    E.e(f"v_lshl_add_u32 v{vCK}, v{vT+1}, 4, v{vT}")
    E.e(f"v_xor_b32 v{vT+3}, 64, v{vCK}")
    E.e(f"v_add_u32 v{vCK+1}, {7*1024}, v{vT+3}")
    E.e(f"v_add_u32 v{vCK+2}, {14*1024}, v{vCK}")
    E.e(f"v_add_u32 v{vCK+3}, {21*1024}, v{vT+3}")
    E.e(f"v_bfe_u32 v{vT}, v{vLane}, 1, 3")
    E.e(f"v_xor_b32 v{vT}, v{vT}, v{vT+2}")
    E.e(f"v_lshlrev_b32 v{vT}, 5, v{vT}")
    E.e(f"v_and_b32 v{vT+1}, 1, v{vLane}")
    E.e(f"v_lshl_add_u32 v{vT}, v{vT+1}, 4, v{vT}")
    E.e(f"v_lshl_add_u32 v{vWD}, v{vT+2}, 13, v{vT}")
    E.e(f"v_add_u32 v{vWD+1}, {32768-1024}, v{vWD}")
    E.e(f"v_xor_b32 v{vT+3}, 128, v{vWD}")
    E.e(f"v_add_u32 v{vWD+2}, {2*(32768-1024)}, v{vT+3}")
    E.e(f"v_add_u32 v{vWD+3}, {3*(32768-1024)}, v{vT+3}")
    E.e(f"s_mul_i32 s{sCKl}, s{sW}, 24576")
    E.e(f"s_add_u32 s{sCKl}, s{sCKl}, {L_CK}")
    E.e(f"s_lshl_b32 s{sWl}, s{sW}, 12")
    E.e(f"s_lshl_b32 s{sCK0}, s{sRT}, 18")
    E.e(f"s_lshl_b32 s{sT}, s{sW}, 16")
    E.e(f"s_add_u32 s{sCK0}, s{sCK0}, s{sT}")
    E.e(f"s_lshl_b32 s{sWo}, s{sW}, 17")
    E.e(f"s_lshl_b32 s{sT}, s{sH}, 8")
    E.e(f"s_add_u32 s{sWo}, s{sWo}, s{sT}")
    E.e("s_waitcnt lgkmcnt(0)")
    srd(E, SWK, 10, 0x400000); srd(E, SCK, 6, 0x200000)

    def rotw(E, j):
        E.e(f"s_add_u32 s{sJ}, s{sRot}, {j}")
        E.e(f"s_and_b32 s{sJ}, s{sJ}, 7")
        E.e(f"s_lshl_b32 s{sJ}, s{sJ}, 19")
        E.e(f"s_add_u32 s{sT2}, s{sWo}, s{sJ}")
    def dma_ck(j):
        slot = j % 3
        ops = [f"s_add_u32 s{sJ}, s{sRot}, {j}", f"s_and_b32 s{sJ}, s{sJ}, 7", f"s_lshl_b32 s{sJ}, s{sJ}, 7", f"s_add_u32 m0, s{sCKl}, {slot*8192}",
               f"s_add_u32 s{sT}, s{sCK0}, s{sJ}"]
        for grp in range(2):
            if grp: ops += [f"s_add_u32 m0, s{sCKl}, {slot*8192 + 4096}", f"s_add_u32 s{sT}, s{sT}, 32768"]
            for i in range(4):
                ops.append(Op("m", lambda E, i=i: E.vmem(f"buffer_load_dwordx4 v{vCK+i}, {s4(SCK)}, s{sT} offen offset:{i*1024} lds", f"c{j}"), 1))
        return ops
    rot_ops = lambda j: [f"s_add_u32 s{sJ}, s{sRot}, {j}", f"s_and_b32 s{sJ}, s{sJ}, 7", f"s_lshl_b32 s{sJ}, s{sJ}, 19"]
    def dma_w(j):
        ops = rot_ops(j) + [f"s_add_u32 m0, s{sWl}, {L_W(j % 3)}", f"s_add_u32 s{sT2}, s{sWo}, s{sJ}"]
        for i in range(4):
            ops.append(Op("m", lambda E, i=i: E.vmem(f"buffer_load_dwordx4 v{vWD+i}, {s4(SWK)}, s{sT2} offen offset:{i*1024} lds", f"c{j}"), 1))
        return ops
    ULOC = {0: L_SP, 1: L_SP + 8192, 2: L_W(2), 3: L_W(2) + 8192, 8: L_W(0), 9: L_W(0) + 8192, 14: L_W(1), 15: L_W(1) + 8192}
    for w in range(4):
        ULOC[4 + w] = L_CK + w * 24576 + 16384
        ULOC[10 + w] = L_CK + w * 24576
    def dma_u(pair):
        d = ULOC[2 * pair + 1] - ULOC[2 * pair]
        ops = rot_ops(pair) + [f"s_mul_i32 s{sT2}, s{sU1}, {d}", f"s_add_u32 s{sT2}, s{sT2}, s{sUl}", f"s_add_u32 m0, s{sT2}, {ULOC[2*pair]}",
                               f"s_add_u32 s{sT2}, s{sWo}, s{sJ}"]
        for i in range(4):
            ops.append(Op("m", lambda E, i=i: E.vmem(f"buffer_load_dwordx4 v{vWD+i}, {s4(SWV)}, s{sT2} offen offset:{i*1024} lds", f"u{pair}"), 1))
        return ops

    put(E, dma_w(0) + dma_ck(0))
    srd(E, SWV, 12, 0x400000); srd(E, SWS, 24, WS_SIZE)
    if tlb:
        sh = {1: 21, 2: 16}[tlb]
        E.e(f"v_lshlrev_b32 v{vT}, {sh}, v{vLane}")
        E.e(f"s_mov_b32 s{SA+3}, 0x20000")
        lists = [[(24, 0x4000000), (8, 0x400000), (16, 1024)], [(10, 0x400000), (14, 0x400000), (18, 512*2752)],
                 [(12, 0x400000), (4, 0x200000), (20, 512*2752)], [(6, 0x200000), (26, 0x200000), (22, 512*2752)]]
        for k in range(3):
            for w in range(4):
                b, sz = lists[w][k]
                if w == 0:
                    E.e(f"s_mov_b32 s{SA}, s{b}"); E.e(f"s_mov_b32 s{SA+1}, s{b+1}"); E.e(f"s_mov_b32 s{SA+2}, {hex(sz)}")
                else:
                    E.e(f"s_cmp_eq_u32 s{sW}, {w}")
                    E.e(f"s_cselect_b32 s{SA}, s{b}, s{SA}"); E.e(f"s_cselect_b32 s{SA+1}, s{b+1}, s{SA+1}"); E.e(f"s_cselect_b32 s{SA+2}, {hex(sz)}, s{SA+2}")
            E.e(f"s_and_b32 s{SA+1}, s{SA+1}, 0xffff")
            E.vmem(f"buffer_load_dword v{vT+4+k}, v{vT}, {s4(SA)}, 0 offen", "t")
    put(E, dma_w(1) + dma_ck(1))
    E.e(f"s_and_b32 s{sUl}, s{sW}, 1")
    E.e(f"s_lshr_b32 s{sU1}, s{sW}, 1")
    if touch:
        E.e(f"v_lshlrev_b32 v{vT}, 10, v{vLane}")
        E.e(f"s_and_b32 s{sT}, s{sH}, 3")
        E.e(f"s_add_u32 s{sJ}, s{sT}, s{sRot}")
        E.e(f"s_add_u32 s{sJ}, s{sJ}, 2")
        E.e(f"s_and_b32 s{sJ}, s{sJ}, 7")
        E.e(f"s_lshl_b32 s{sJ}, s{sJ}, 7")
        E.e(f"s_add_u32 s{sT2}, s{sCK0}, s{sJ}")
        E.vmem(f"buffer_load_dword v{vT+4}, v{vT}, {s4(SCK)}, s{sT2} offen{tflag}", "t")
        E.e(f"v_lshrrev_b32 v{vT+1}, 1, v{vLane}")
        E.e(f"v_lshlrev_b32 v{vT+1}, 13, v{vT+1}")
        E.e(f"v_and_b32 v{vT+3}, 1, v{vLane}")
        E.e(f"v_lshl_add_u32 v{vT+1}, v{vT+3}, 7, v{vT+1}")
        E.e(f"s_cmp_lt_u32 s{sW}, 2")
        E.e(f"s_cselect_b32 s{SA}, s10, s12")
        E.e(f"s_cselect_b32 s{SA+1}, s11, s13")
        E.e(f"s_and_b32 s{SA+1}, s{SA+1}, 0xffff")
        E.e(f"s_mov_b32 s{SA+2}, 0x400000")
        E.e(f"s_mov_b32 s{SA+3}, 0x20000")
        E.e(f"s_lshl_b32 s{sT2}, s{sRT}, 1")
        E.e(f"s_add_u32 s{sT2}, s{sT2}, s{sUl}")
        E.e(f"s_lshl_b32 s{sT2}, s{sT2}, 18")
        E.e(f"s_lshl_b32 s{sJ}, s{sH}, 8")
        E.e(f"s_add_u32 s{sU5}, s{sT2}, s{sJ}")
        E.vmem(f"buffer_load_dword v{vT+5}, v{vT+1}, {s4(SA)}, s{sU5} offen{tflag}", "t")
        E.e(f"s_and_b32 s{sT}, s{sT}, 1")
        E.e(f"s_add_u32 s{sJ}, s{sT}, s{sRot}")
        E.e(f"s_add_u32 s{sJ}, s{sJ}, 6")
        E.e(f"s_and_b32 s{sJ}, s{sJ}, 7")
        E.e(f"s_lshl_b32 s{sJ}, s{sJ}, 7")
        E.e(f"s_add_u32 s{sT2}, s{sCK0}, s{sJ}")
        E.vmem(f"buffer_load_dword v{vT+6}, v{vT}, {s4(SCK)}, s{sT2} offen{tflag}", "t")
    E.e(f"s_lshl_b32 s{sT2}, s{sRT}, 1")
    E.e(f"s_add_u32 s{sT2}, s{sT2}, s{sUl}")
    E.e(f"s_lshl_b32 s{sT2}, s{sT2}, 18")
    E.e(f"s_lshl_b32 s{sJ}, s{sH}, 8")
    E.e(f"s_add_u32 s{sU5}, s{sT2}, s{sJ}")
    if codepf:
        E.e(f"s_lshr_b32 s{sT}, s2, 3")
        E.e(f"s_cmp_ge_u32 s{sT}, 2")
        E.e(f"s_cbranch_scc1 {name}_nopf")
        E.e(f"s_lshl_b32 s{sT}, s{sT}, 2")
        E.e(f"s_add_u32 s{sT}, s{sT}, s{sW}")
        E.e(f"s_lshl_b32 s{sT}, s{sT}, 13")
        E.e(f"v_lshl_add_u32 v{vT}, v{vLane}, 7, s{sT}")
        E.e(f"v_min_u32 v{vT}, code_end-{name}_pc-4, v{vT}")
        E.e(f"s_getpc_b64 s[{sU2}:{sU3}]")
        E.e(f"{name}_pc:")
        E.e(f"v_mov_b32 v{vT+1}, s{sU3}")
        E.e(f"v_add_co_u32 v{vT}, vcc, s{sU2}, v{vT}")
        E.e("s_nop 1")
        E.e(f"v_addc_co_u32 v{vT+1}, vcc, 0, v{vT+1}, vcc")
        E.e(f"global_load_dword v{vT+7}, v[{vT}:{vT+1}], off")
        E.e(f"{name}_nopf:")
    E.e(f"s_lshl_b32 s{sUl}, s{sUl}, 12")
    E.e(f"v_lshrrev_b32 v{vT+2}, 4, v{vLane}")
    E.e(f"v_bfe_u32 v{vT}, v{vLane}, 2, 2")
    E.e(f"v_lshl_add_u32 v{vT+1}, v{vT+2}, 3, v{vT}")
    E.e(f"v_lshlrev_b32 v{vT+1}, 8, v{vT+1}")
    E.e(f"v_and_b32 v{vT+3}, 3, v{vLane}")
    E.e(f"v_lshl_add_u32 v{vT+1}, v{vT+3}, 3, v{vT+1}")
    E.e(f"v_and_b32 v{vT+3}, 1, v{vT+2}")
    E.e(f"v_lshl_add_u32 v{vT}, v{vT+3}, 2, v{vT}")
    E.e(f"v_lshl_add_u32 v{vW}, v{vT}, 5, v{vT+1}")
    for c in range(1, 8): E.e(f"v_xor_b32 v{vW+c}, {c*32}, v{vW}")
    E.e(f"v_and_b32 v{vT}, 15, v{vLane}")
    E.e(f"v_lshrrev_b32 v{vT+1}, 1, v{vT}")
    E.e(f"v_xor_b32 v{vT+1}, v{vT+1}, v{vT+2}")
    E.e(f"v_lshlrev_b32 v{vT+1}, 4, v{vT+1}")
    E.e(f"v_lshl_add_u32 v{vA0}, v{vT}, 7, v{vT+1}")
    E.e(f"v_add_u32 v{vA0}, s{sCKl}, v{vA0}")
    E.e(f"v_xor_b32 v{vA1}, 64, v{vA0}")
    E.e(f"s_lshl_b32 s{sKst}, s{sH}, 19")
    E.e(f"s_lshl_b32 s{sT}, s{sRT}, 16")
    E.e(f"s_add_u32 s{sKst}, s{sKst}, s{sT}")
    E.e(f"s_lshl_b32 s{sT}, s{sW}, 14")
    E.e(f"s_add_u32 s{sKst}, s{sKst}, s{sT}")
    E.e(f"s_add_u32 s{sVst}, s{sKst}, {hex(WS_V)}")
    E.e(f"s_add_u32 s{sKst}, s{sKst}, {hex(WS_K)}")
    E.e(f"s_mov_b32 s{sSc}, {hex(SCALE_BITS)}")
    stamp(E, 3)
    E.wait_vm("c0")
    E.e("s_barrier")
    stamp(E, 4)

    W = Weave()
    S = Stream(W, lead=20, age=10, maxper=1)
    fi = [0]; ring_last = {}
    def wfrag_read(base_reg, off, first_use, earliest, latest=10**9):
        r = WF + (fi[0] % NWF) * 4
        ea = max(earliest, ring_last.get(fi[0] % NWF, -10**9))
        S.read(f"wf{fi[0]}", [f"ds_read_b64_tr_b16 {v2(r)}, v{base_reg} offset:{off}", f"ds_read_b64_tr_b16 {v2(r+2)}, v{base_reg} offset:{off+1024}"], first_use, ea, latest=latest)
        ring_last[fi[0] % NWF] = first_use + 3
        fi[0] += 1
        return r
    BARPOS = 48
    bar_slot = {0: -10**9}
    for j in range(1, 8): bar_slot[j] = (j - 1) * 64 + BARPOS
    for j in range(8):
        for ks in range(2):
            kb = 2 * j + ks
            base = len(W.bb)
            for a in range(4):
                S.read(f"cf{kb}_{a}", [f"ds_read_b128 {a4(CF(a,kb))}, v{vA1 if ks else vA0} offset:{(j%3)*8192 + a*2048}"], base + a, bar_slot[j], lead=24, latest=j*64+BARPOS)
            for c in range(8):
                r = wfrag_read(vW + c, L_W(j % 3) + ks * 8192, base + 4 * c, bar_slot[j], latest=j*64+BARPOS)
                for a in range(4):
                    W.mf(f"{MFMA} {v4(KT(c,a))}, {v4(r)}, {a4(CF(a,kb))}, {'0' if kb == 0 else v4(KT(c,a))}")
    P1END = len(W.bb)
    VT = lambda a, c: ACC2 + (c * 4 + a) * 4
    def uaddr(u, cc):
        loc = ULOC[u]; win = loc // 65536
        return vW + win * 4 + cc, loc - win * 65536
    B7 = 7 * 64 + BARPOS
    ubar = {u: (B7 if u < 8 else (P1END + 5 * 16 if u < 14 else P1END + 11 * 16)) for u in range(16)}
    ADDR2B = P1END + 256 - 22
    for u in range(16):
        base = len(W.bb)
        for c in range(4):
            reg, off = uaddr(u, c)
            r = wfrag_read(reg, off, base + 4 * c, ubar[u], latest=ADDR2B)
            for a in range(4):
                W.mf(f"{MFMA} {v4(VT(a,c))}, {a4(CF(a,u))}, {v4(r)}, {'0' if u == 0 else v4(VT(a,c))}")
    P2AEND = len(W.bb)
    VB = lambda a, c: ACC1 + ((c & 1) * 4 + a) * 4
    for c in range(4):
        for u in range(16):
            base = len(W.bb)
            reg, off = uaddr(u, c)
            r = wfrag_read(reg, off, base, ADDR2B + 1)
            for a in range(4):
                W.mf(f"{MFMA} {v4(VB(a,c))}, {a4(CF(a,u))}, {v4(r)}, {'0' if u == 0 else v4(VB(a,c))}")
    NTOT = len(W.bb)
    def barrier_at(slot, vmtags):
        def f(E):
            E.wait_vm(*vmtags)
            E.e("s_waitcnt lgkmcnt(0)"); E.lg = []
            E.e("s_barrier")
        W.first(slot, f, -2)
    def addr2a(E):
        for cc in range(4):
            E.e(f"v_add_u32 v{vW+4+cc}, 0x10000, v{vW+cc}")
            E.e(f"v_add_u32 v{vW+8+cc}, 0x20000, v{vW+cc}")
    W.first(B7, addr2a, -1)
    def addr2b(E):
        for k in range(12): E.e(f"v_xor_b32 v{vW+k}, 128, v{vW+k}")
    W.add(ADDR2B, addr2b)
    S.place(E)
    def spread(ops, s0, s1):
        groups = [[]]
        for op in ops:
            groups[-1].append(op)
            if classify(op)[0] == "m": groups.append([])
        assert not groups[-1]; groups.pop()
        n = len(groups); lo = s0
        for k, grp in enumerate(groups):
            g = max(s0 + (k * (s1 - s0)) // n, lo + len(grp) - 2)
            if W.load[g] >= 1 and g + 1 < s1 and W.load[g + 1] == 0: g += 1
            for q, op in enumerate(grp[:-1]):
                W.add(max(lo, g - (len(grp) - 2 - q)) , op)
            W.add(g, grp[-1]); lo = g + 1
        return lo
    X0, X1, WR = 128, 132, 136
    lnld = [f"s_mov_b32 s{SA}, s4", f"s_and_b32 s{SA+1}, s5, 0xffff", f"s_mov_b32 s{SA+2}, 0x200000", f"s_mov_b32 s{SA+3}, 0x20000",
            f"s_lshl_b32 s{sT}, s2, 13", f"s_lshl_b32 s{sT2}, s{sW}, 11", f"s_add_u32 s{sT}, s{sT}, s{sT2}",
            Op("m", lambda E: E.vmem(f"buffer_load_dwordx4 {v4(X0)}, v{vL16}, {s4(SA)}, s{sT} offen", "ln")),
            Op("m", lambda E: E.vmem(f"buffer_load_dwordx4 {v4(X1)}, v{vL16}, {s4(SA)}, s{sT} offen offset:1024", "ln")),
            f"s_mov_b32 s{SA}, s16", f"s_and_b32 s{SA+1}, s17, 0xffff", f"s_mov_b32 s{SA+2}, 1024",
            Op("m", lambda E: E.vmem(f"buffer_load_dwordx4 {v4(WR)}, v{vL16}, {s4(SA)}, 0 offen", "ln"))]
    ffld = [f"s_lshl_b32 s{sT}, s2, 2", f"s_add_u32 s{sT}, s{sT}, s{sW}", f"s_mul_hi_u32 s{sU2}, s{sT}, 12485371",
            f"s_mul_i32 s{sT2}, s{sU2}, 344", f"s_sub_u32 s{sT}, s{sT}, s{sT2}", f"s_mul_hi_u32 s{sU3}, s{sT}, 99882961",
            f"s_mul_i32 s{sT2}, s{sU3}, 43", f"s_sub_u32 s{sU4}, s{sT}, s{sT2}",
            Op("s", lambda E: put(E, [f"s_cmp_eq_u32 s{sU2}, 0", f"s_cselect_b32 s{SA}, s18, s20", f"s_cselect_b32 s{SA+1}, s19, s21"])),
            Op("s", lambda E: put(E, [f"s_cmp_eq_u32 s{sU2}, 2", f"s_cselect_b32 s{SA}, s22, s{SA}", f"s_cselect_b32 s{SA+1}, s23, s{SA+1}"])),
            f"s_and_b32 s{SA+1}, s{SA+1}, 0xffff", f"s_mov_b32 s{SA+2}, {512*2752}",
            f"s_mul_i32 s{sT}, s{sU3}, {64*2752}", f"s_lshl_b32 s{sT2}, s{sU4}, 6", f"s_add_u32 s{sT}, s{sT}, s{sT2}"]
    for i in range(4):
        ffld += [f"s_add_u32 m0, s{sWl}, {L_SP + i*1024}", f"s_add_u32 s{sT2}, s{sT}, {i*16*2752}",
                 Op("m", lambda E: E.vmem(f"buffer_load_dwordx4 v{vT}, {s4(SA)}, s{sT2} offen lds", "ff"))]
    W.chain([f"v_lshrrev_b32 v{vT}, 2, v{vLane}", f"v_mul_u32_u24 v{vT}, 2752, v{vT}", f"v_and_b32 v{vT+1}, 3, v{vLane}",
             f"v_lshl_add_u32 v{vT}, v{vT+1}, 4, v{vT}"], 0)
    wold = [f"s_mov_b32 s{SA}, s14", f"s_and_b32 s{SA+1}, s15, 0xffff", f"s_mov_b32 s{SA+2}, 0x400000",
            f"s_lshr_b32 s{sT}, s2, 1", f"s_lshl_b32 s{sT}, s{sT}, 15", f"s_and_b32 s{sM}, s2, 1", f"s_lshl_b32 s{sM}, s{sM}, 2",
            f"s_add_u32 s{sM}, s{sM}, s{sW}", f"s_lshl_b32 s{sT2}, s{sM}, 7", f"s_add_u32 s{sT}, s{sT}, s{sT2}"]
    for i in range(4):
        wold += [f"s_add_u32 m0, s{sWl}, {L_SP + i*1024}", f"s_add_u32 s{sT2}, s{sT}, {i*8192}",
                 Op("m", lambda E: E.vmem(f"buffer_load_dwordx4 v{vT+2}, {s4(SA)}, s{sT2} offen lds", "wo"))]
    W.chain([f"v_lshrrev_b32 v{vT+2}, 3, v{vLane}", f"v_lshlrev_b32 v{vT+2}, 10, v{vT+2}", f"v_and_b32 v{vT+3}, 7, v{vLane}",
             f"v_lshl_add_u32 v{vT+2}, v{vT+3}, 4, v{vT+2}"], 4)
    spread(dma_w(2) + dma_ck(2) + lnld, 0, BARPOS)
    for j in range(8):
        bs = j * 64 + BARPOS
        barrier_at(bs, [f"c{j+1}"] if j < 7 else ["u0", "u1", "u2", "u3"])
        if j + 3 < 8:
            ops = dma_w(j + 3) + dma_ck(j + 3)
            if j == 0: ops = ffld + ops
            if j == 2 and wof: ops = ops + wold
            if j == 4: ops = ops + (dma_u(0) if not wof else [])
        elif j == 5: ops = (dma_u(0) if wof else []) + dma_u(1) + dma_u(2) + dma_u(3)
        elif j == 6: ops = dma_u(4) + dma_u(5) + dma_u(6)
        else: ops = dma_u(7)
        spread(ops, bs + 1, bs + 62 if j < 7 else bs + 24)
    barrier_at(P1END + 5 * 16, ["u4", "u5", "u6"])
    barrier_at(P1END + 11 * 16, ["u7"])
    def pack_ops(src0, src1, sbase, idx, scale=False):
        L = []
        if scale:
            L += [f"v_mul_f32 v{r}, s{sSc}, v{r}" for r in list(range(src0, src0 + 4)) + list(range(src1, src1 + 4))]
        L += [f"v_cvt_pk_bf16_f32 v{src0}, v{src0}, v{src0+1}", f"v_cvt_pk_bf16_f32 v{src0+1}, v{src0+2}, v{src0+3}",
              f"v_cvt_pk_bf16_f32 v{src0+2}, v{src1}, v{src1+1}", f"v_cvt_pk_bf16_f32 v{src0+3}, v{src1+2}, v{src1+3}",
              f"s_add_u32 s{sWv}, s{sbase}, {(idx>>2)*4096}",
              Op("m", lambda E: E.vmem(f"buffer_store_dwordx4 {v4(src0)}, v{vL16}, {s4(SWS)}, s{sWv} offen offset:{(idx&3)*1024}{stflag}", "st"), 2)]
        return L
    g = P2AEND + 8
    for c in range(4):
        for n in range(2):
            g, left = W.chain(pack_ops(VT(2 * n, c), VT(2 * n + 1, c), sVst, n * 8 + c), g); assert not left
    assert g < P2AEND + 64 + 8
    for c in range(3):
        g = P2AEND + (c + 1) * 64 + 8
        for n in range(2):
            g, left = W.chain(pack_ops(VB(2 * n, c), VB(2 * n + 1, c), sVst, n * 8 + 4 + c), g); assert not left
    g = P1END + 10
    for t in range(4):
        for a in range(4):
            g, left = W.chain(pack_ops(KT(2 * t, a), KT(2 * t + 1, a), sKst, a * 4 + t, scale=True), g); assert not left
    gK = g
    assert gK < P2AEND - 4, gK
    FFT = 176
    sa, sb = sWv, sKt
    tr = [f"v_lshrrev_b32 v{vT+4}, 4, v{vLane}", f"v_bfe_u32 v{vT+5}, v{vLane}, 2, 2", f"v_lshl_add_u32 v{vT+4}, v{vT+4}, 3, v{vT+5}",
          f"v_lshlrev_b32 v{vT+4}, 6, v{vT+4}", f"v_lshl_add_u32 v{vT+4}, v{vT+1}, 3, v{vT+4}", f"v_add_u32 v{vT+4}, s{sWl}, v{vT+4}",
          Op("s", lambda E: E.wait_vm("ff"))]
    for js in range(2):
        for ks in range(2):
            q = js * 2 + ks; o = L_SP + ks * 2048 + js * 32
            tr.append(Op("m", lambda E, q=q, o=o: E.lds(f"ds_read_b64_tr_b16 {v2(FFT+4*q)}, v{vT+4} offset:{o}", "fft")))
            tr.append(Op("m", lambda E, q=q, o=o: E.lds(f"ds_read_b64_tr_b16 {v2(FFT+4*q+2)}, v{vT+4} offset:{o+256}", "fft")))
    tr += [f"s_lshl_b32 s{sa}, s{sU4}, 16", f"s_lshl_b32 s{sb}, s{sU2}, 14", f"s_add_u32 s{sa}, s{sa}, s{sb}", f"s_lshl_b32 s{sb}, s{sU3}, 11",
           f"s_add_u32 s{sa}, s{sa}, s{sb}", f"s_add_u32 s{sa}, s{sa}, {hex(WS_GUF)}",
           Op("s", lambda E: put(E, [f"s_cmp_eq_u32 s{sU2}, 2", f"s_cselect_b32 s{sa}, 0x7fff0000, s{sa}"])),
           f"s_add_u32 s{sb}, s{sa}, 32768", 4, Op("s", lambda E: E.wait_lg("fft"))]
    for q in range(4):
        tr.append(Op("m", lambda E, q=q: E.vmem(f"buffer_store_dwordx4 {v4(FFT+4*q)}, v{vL16}, {s4(SWS)}, s{sb if q >= 2 else sa} offen offset:{(q&1)*1024}{sflag}", "st")))
        tr.append(2)
    gT, left = W.chain(tr, 2 * 64 + 2); assert not left
    assert gT < 2 * 64 + BARPOS + 30, gT
    if wof:
        tw = [f"v_lshrrev_b32 v{vT+4}, 2, v{vLane}", f"v_lshlrev_b32 v{vT+4}, 7, v{vT+4}",
              f"v_lshl_add_u32 v{vT+4}, v{vT+1}, 3, v{vT+4}", f"v_add_u32 v{vT+4}, s{sWl}, v{vT+4}", Op("s", lambda E: E.wait_vm("wo"))]
        for mm in range(4):
            tw.append(Op("m", lambda E, mm=mm: E.lds(f"ds_read_b64_tr_b16 {v2(FFT+4*mm)}, v{vT+4} offset:{L_SP + mm*32}", "wot")))
            tw.append(Op("m", lambda E, mm=mm: E.lds(f"ds_read_b64_tr_b16 {v2(FFT+4*mm+2)}, v{vT+4} offset:{L_SP + mm*32 + 2048}", "wot")))
        tw += [f"s_lshl_b32 s{sa}, s{sM}, 19", f"s_lshr_b32 s{sb}, s2, 1", f"s_lshl_b32 s{sb}, s{sb}, 12", f"s_add_u32 s{sa}, s{sa}, s{sb}",
               f"s_add_u32 s{sa}, s{sa}, {hex(WS_WOF)}", 4, Op("s", lambda E: E.wait_lg("wot"))]
        for mm in range(4):
            tw.append(Op("m", lambda E, mm=mm: E.vmem(f"buffer_store_dwordx4 {v4(FFT+4*mm)}, v{vL16}, {s4(SWS)}, s{sa} offen offset:{mm*1024}{sflag}", "st")))
            tw.append(2)
        gW, left = W.chain(tw, 5 * 64 + 2); assert not left
        assert gW < 5 * 64 + BARPOS + 30
    if wqt:
        tq = [f"v_lshrrev_b32 v{vA0}, 1, v{vLane}", f"v_lshlrev_b32 v{vA0}, 13, v{vA0}", f"v_and_b32 v{vA1}, 1, v{vLane}",
              f"v_lshl_add_u32 v{vA0}, v{vA1}, 7, v{vA0}",
              f"s_mov_b32 s{SA}, s8", f"s_and_b32 s{SA+1}, s9, 0xffff", f"s_mov_b32 s{SA+2}, 0x400000",
              Op("m", lambda E: E.vmem(f"buffer_load_dword v{vA1}, v{vA0}, {s4(SA)}, s{sU5} offen{tflag}", "t"))]
        W.chain(tq, P1END + 11 * 16 + 2)
    F = [140, 148]; D = [156, 164]; WRF = 140
    Sm = [172, 173]; Tm = [174, 175]; MEAN = [vT + 6, vT + 7]; MB = [vW + 8, vW + 9]; AD = vW + 10
    R2 = range(2)
    ln = [Op("s", lambda E: E.wait_vm("ln"))]
    for rr, X in enumerate((X0, X1)):
        for k in range(4): ln += [f"v_lshlrev_b32 v{F[rr]+2*k}, 16, v{X+k}", f"v_and_b32 v{F[rr]+2*k+1}, 0xffff0000, v{X+k}"]
    ln += [f"v_add_f32 v{Sm[rr]}, v{F[rr]}, v{F[rr]+1}" for rr in R2]
    for k in range(2, 8): ln += [f"v_add_f32 v{Sm[rr]}, v{Sm[rr]}, v{F[rr]+k}" for rr in R2]
    ln += wsum_ops(Sm, Tm)
    ln += [f"v_mul_f32 v{MEAN[rr]}, 0x3b000000, v{Sm[rr]}" for rr in R2]
    for k in range(8): ln += [f"v_sub_f32 v{D[rr]+k}, v{F[rr]+k}, v{MEAN[rr]}" for rr in R2]
    ln += [f"v_mul_f32 v{Sm[rr]}, v{D[rr]}, v{D[rr]}" for rr in R2]
    for k in range(1, 8): ln += [f"v_fmac_f32 v{Sm[rr]}, v{D[rr]+k}, v{D[rr]+k}" for rr in R2]
    ln += wsum_ops(Sm, Tm)
    ln += [f"v_mul_f32 v{Sm[rr]}, 0x3b000000, v{Sm[rr]}" for rr in R2]
    ln += [f"v_cvt_pk_bf16_f32 v{Tm[rr]}, v{Sm[rr]}, v{MEAN[rr]}" for rr in R2]
    ln += [f"v_and_b32 v{MB[rr]}, 0xffff0000, v{Tm[rr]}" for rr in R2]
    ln += [f"v_lshlrev_b32 v{Sm[rr]}, 16, v{Tm[rr]}" for rr in R2]
    ln += [f"v_add_f32 v{Sm[rr]}, 0x3727c5ac, v{Sm[rr]}" for rr in R2]
    ln += [f"v_cvt_pk_bf16_f32 v{Sm[rr]}, v{Sm[rr]}, v{Sm[rr]}" for rr in R2]
    ln += [f"v_lshlrev_b32 v{Sm[rr]}, 16, v{Sm[rr]}" for rr in R2]
    ln += [f"v_sqrt_f32 v{Sm[rr]}, v{Sm[rr]}" for rr in R2] + [1]
    ln += [f"v_cvt_pk_bf16_f32 v{Sm[rr]}, v{Sm[rr]}, v{Sm[rr]}" for rr in R2]
    ln += [f"v_lshlrev_b32 v{Sm[rr]}, 16, v{Sm[rr]}" for rr in R2]
    ln += [f"v_rcp_f32 v{Tm[rr]}, v{Sm[rr]}" for rr in R2]
    for k in range(8): ln += [f"v_sub_f32 v{D[rr]+k}, v{F[rr]+k}, v{MB[rr]}" for rr in R2]
    for k in range(4): ln += [f"v_cvt_pk_bf16_f32 v{F[rr]+k}, v{D[rr]+2*k}, v{D[rr]+2*k+1}" for rr in R2]
    for k in range(4):
        for rr in R2: ln += [f"v_lshlrev_b32 v{D[rr]+2*k}, 16, v{F[rr]+k}", f"v_and_b32 v{D[rr]+2*k+1}, 0xffff0000, v{F[rr]+k}"]
    for k in range(8): ln += [f"v_mul_f32 v{F[rr]+k}, v{D[rr]+k}, v{Tm[rr]}" for rr in R2]
    for k in range(8): ln += [f"v_fma_f32 v{D[rr]+k}, -v{F[rr]+k}, v{Sm[rr]}, v{D[rr]+k}" for rr in R2]
    for k in range(8): ln += [f"v_fmac_f32 v{F[rr]+k}, v{D[rr]+k}, v{Tm[rr]}" for rr in R2]
    for k in range(4): ln += [f"v_cvt_pk_bf16_f32 v{X+k}, v{F[rr]+2*k}, v{F[rr]+2*k+1}" for rr, X in enumerate((X0, X1))]
    ln += [f"v_lshrrev_b32 v{AD}, 2, v{vLane}", f"v_lshlrev_b32 v{AD}, 12, v{AD}", f"v_and_b32 v{AD+1}, 3, v{vLane}", f"v_lshl_add_u32 v{AD}, v{AD+1}, 8, v{AD}",
           f"s_lshr_b32 s{sL1}, s2, 3", f"s_lshl_b32 s{sL1}, s{sL1}, 16", f"s_bfe_u32 s{sL2}, s2, 0x20001", f"s_lshl_b32 s{sL2}, s{sL2}, 10",
           f"s_add_u32 s{sL1}, s{sL1}, s{sL2}", f"s_and_b32 s{sL2}, s2, 1", f"s_lshl_b32 s{sL2}, s{sL2}, 7", f"s_add_u32 s{sL1}, s{sL1}, s{sL2}",
           f"s_lshl_b32 s{sL2}, s{sW}, 5", f"s_add_u32 s{sL1}, s{sL1}, s{sL2}",
           Op("m", lambda E: E.vmem(f"buffer_store_dwordx4 {v4(X0)}, v{AD}, {s4(SWS)}, s{sL1} offen{sflag}", "st"), 1),
           Op("m", lambda E: E.vmem(f"buffer_store_dwordx4 {v4(X1)}, v{AD}, {s4(SWS)}, s{sL1} offen offset:16{sflag}", "st"), 1)]
    for k in range(4): ln += [f"v_lshlrev_b32 v{WRF+2*k}, 16, v{WR+k}", f"v_and_b32 v{WRF+2*k+1}, 0xffff0000, v{WR+k}"]
    for k in range(4):
        for rr, X in enumerate((X0, X1)): ln += [f"v_lshlrev_b32 v{D[rr]+2*k}, 16, v{X+k}", f"v_and_b32 v{D[rr]+2*k+1}, 0xffff0000, v{X+k}"]
    ln += [f"v_mul_f32 v{Sm[rr]}, v{D[rr]}, v{WRF}" for rr in R2]
    for k in range(1, 8): ln += [f"v_fmac_f32 v{Sm[rr]}, v{D[rr]+k}, v{WRF+k}" for rr in R2]
    ln += wsum_ops(Sm, Tm)
    ln += [f"v_cvt_pk_bf16_f32 v{Tm[0]}, v{Sm[0]}, v{Sm[1]}", f"v_lshlrev_b32 v{MEAN[0]}, 16, v{Tm[0]}", f"v_and_b32 v{MEAN[1]}, 0xffff0000, v{Tm[0]}",
           f"s_lshl_b32 s{sL1}, s2, 3", f"s_lshl_b32 s{sL2}, s{sW}, 1", f"s_add_u32 s{sL1}, s{sL1}, s{sL2}", f"s_sub_u32 s{sL3}, 2047, s{sL1}", f"s_sub_u32 s{sL4}, 2046, s{sL1}"]
    ln += [f"v_add_f32 v{MEAN[rr]}, 0, v{MEAN[rr]}" for rr in R2]
    ln += [f"v_ashrrev_i32 v{Sm[rr]}, 31, v{MEAN[rr]}" for rr in R2]
    ln += [f"v_or_b32 v{Sm[rr]}, 0x80000000, v{Sm[rr]}" for rr in R2]
    ln += [f"v_xor_b32 v{MEAN[rr]}, v{MEAN[rr]}, v{Sm[rr]}" for rr in R2]
    ln += [f"v_and_b32 v{MEAN[rr]}, 0xffff0000, v{MEAN[rr]}" for rr in R2]
    ln += [f"v_or_b32 v{MEAN[0]}, s{sL3}, v{MEAN[0]}", f"v_or_b32 v{MEAN[1]}, s{sL4}, v{MEAN[1]}", f"v_mov_b32 v{AD}, 0",
           f"s_lshl_b32 s{sL1}, s{sL1}, 2", f"s_add_u32 s{sL1}, s{sL1}, {hex(WS_RS)}",
           Op("m", lambda E: E.vmem(f"buffer_store_dwordx2 {v2(MEAN[0])}, v{AD}, {s4(SWS)}, s{sL1} offen{sflag}", "st"), 1)]
    gL, lnleft = W.chain(ln, 64 + BARPOS + 2, B7 - 2)
    assert not lnleft
    print(f"k1: gK {gK} gT {gT} gL {gL} (P1END {P1END} P2AEND {P2AEND} NTOT {NTOT})")
    for q, sl in enumerate((128, 256, 384, P1END, P2AEND)):
        W.pre(sl, (lambda q: lambda E: stamp(E, 5 + q))(q))
    W.emit(E)
    stamp(E, 10)
    put(E, lnleft)
    E.e("s_nop 7")
    for n in range(2): put(E, pack_ops(VB(2 * n, 3), VB(2 * n + 1, 3), sVst, n * 8 + 7))
    if PROF["on"]:
        stamp(E, 11)
        E.e("s_waitcnt vmcnt(0)")
    stamp_flush(E, 0, 4, SWS, sW, 64)
    E.e(f"{name}_end:")
    E.e("s_endpgm")
    for p in check(E.L, name): print("HAZARD", p)
    return head(name) + E.text(), kd(name, 512, 256, 102)

if __name__ == "__main__":
    t, k = gen_k1()
    print(len(t.splitlines()))
```

```python
from common import *

BIGNEG = "0xf149f2ca"
LTHR = "0x5d800000"

def gen_k2(name="k2_kernel", stflag="", lthr=LTHR, rot=0, touch=0, tflag=''):
    E = Em()
    N = name
    SWQ, SWS, SKV, SG, SU, SD = 16, 20, 24, 28, 32, 36
    sW, sH, sP, sT, sT2, sT3 = 40, 41, 42, 43, 44, 45
    sTgO, sTgA = 46, 47
    sSrc0, sSrc1, sRP, sRd = 48, 49, 50, 51
    sCnt, sEv = 52, 53
    eSw, eP1, eP2, ePl, eDr, eFF = 54, 55, 56, 57, 58, 59
    sDual, sXN, sWo, sWl = 60, 61, 62, 63
    sJ, sNB, sKVh, sI = 96, 97, 98, 99
    sRet = 100
    Sb = lambda par, a, b: ((par * 4 + b) * 2 + a) * 4
    Pb = lambda par, b: 64 + (par * 4 + b) * 4
    IN = lambda a, b: 96 + (a * 4 + b) * 4
    LS = lambda b: 128 + b * 4
    ONES = 144; NEGM = 148; DM = 152; NEGA = 156
    vRd, vL16, vLane, vMask, vKey, vXa = 160, 161, 162, 163, 164, 165
    vW = 166; vWD = 174; vT = 178
    QV = lambda b, t: 192 + (b * 4 + t) * 4
    WF = 128
    O = lambda c, b: (c * 4 + b) * 4
    XS = lambda k: 128 + 4 * k
    GU = lambda mat, k: 144 + (mat * 4 + k) * 4
    KF = lambda i: 192 + 4 * i
    VF = lambda c: 224 + 4 * c
    XF = lambda kb, b: (kb * 4 + b) * 4
    QT = lambda c, b: (c * 4 + b) * 4
    L_WQ = 32768; L_QX = 131072
    L_NM = 65536
    L_FW = 65536 + 8192
    L_FR = 65536 + 57344

    E.e("s_cmp_ge_u32 s2, 256")
    E.e(f"s_cbranch_scc1 {N}_end")
    stamp_init(E)
    E.e("s_load_dwordx2 s[4:5], s[0:1], 16")
    E.e("s_load_dwordx2 s[6:7], s[0:1], 104")
    E.e("s_load_dwordx2 s[12:13], s[0:1], 80")
    E.e(f"v_and_b32 v{vLane}, 63, v0")
    E.e(f"v_lshrrev_b32 v{vT}, 6, v0")
    E.e(f"v_lshlrev_b32 v{vL16}, 4, v{vLane}")
    E.e(f"v_readfirstlane_b32 s{sW}, v{vT}")
    E.e(f"s_and_b32 s{sT}, s2, 7")
    E.e(f"s_lshr_b32 s{sT2}, s2, 3")
    E.e(f"s_and_b32 s{sP}, s{sT2}, 7")
    E.e(f"s_lshr_b32 s{sT2}, s{sT2}, 3")
    E.e(f"s_lshl_b32 s{sH}, s{sT}, 2")
    E.e(f"s_add_u32 s{sH}, s{sH}, s{sT2}")
    E.e(f"v_lshrrev_b32 v{vT+2}, 4, v{vLane}")
    E.e(f"v_bfe_u32 v{vT}, v{vLane}, 1, 3")
    E.e(f"v_xor_b32 v{vT}, v{vT}, v{vT+2}")
    E.e(f"v_lshlrev_b32 v{vT}, 5, v{vT}")
    E.e(f"v_and_b32 v{vT+1}, 1, v{vLane}")
    E.e(f"v_lshl_add_u32 v{vT}, v{vT+1}, 4, v{vT}")
    E.e(f"v_lshl_add_u32 v{vWD}, v{vT+2}, 13, v{vT}")
    E.e(f"v_add_u32 v{vWD+1}, {32768-1024}, v{vWD}")
    E.e(f"v_xor_b32 v{vT+3}, 128, v{vWD}")
    E.e(f"v_add_u32 v{vWD+2}, {2*(32768-1024)}, v{vT+3}")
    E.e(f"v_add_u32 v{vWD+3}, {3*(32768-1024)}, v{vT+3}")
    E.e(f"s_lshl_b32 s{sT}, s{sP}, 1")
    E.e(f"s_sub_u32 s{sT2}, 30, s{sT}")
    E.e(f"s_add_u32 s{sT3}, s{sT2}, s{sW}")
    E.e(f"s_add_u32 s{sT}, s{sT}, s{sW}")
    E.e(f"s_sub_u32 s{sT}, s{sT}, 2")
    E.e(f"s_cmp_lt_u32 s{sW}, 2")
    E.e(f"s_cselect_b32 s{sTgO}, s{sT3}, s{sT}")
    E.e(f"s_lshl_b32 s{sXN}, s{sTgO}, 16")
    E.e(f"s_lshl_b32 s{sWl}, s{sW}, 12")
    E.e(f"s_lshl_b32 s{sWo}, s{sW}, 17")
    E.e(f"s_lshl_b32 s{sT}, s{sH}, 8")
    E.e(f"s_add_u32 s{sWo}, s{sWo}, s{sT}")
    E.e(f"s_lshl_b32 s{sNB}, s{sH}, 1")
    E.e(f"s_add_u32 s{sNB}, s{sNB}, s{sP}")
    if not rot: E.e(f"s_mov_b32 s{sNB}, 0")
    E.e(f"s_lshl_b32 s{sT3}, s{sW}, 11")
    E.e(f"s_add_u32 s{sT3}, s{sT3}, {hex(WS_RS)}")
    E.e("s_waitcnt lgkmcnt(0)")
    srd(E, SWQ, 4, 0x400000); ws_shift(E, 6); srd(E, SWS, 6, wsz())

    def dma_w(j):
        ops = []
        for i in range(4):
            def op(E, i=i):
                if i == 0:
                    E.e(f"s_add_u32 m0, s{sWl}, {L_WQ + j*16384}")
                    E.e(f"s_add_u32 s{sI}, s{sNB}, {j}")
                    E.e(f"s_and_b32 s{sI}, s{sI}, 7")
                    E.e(f"s_lshl_b32 s{sT2}, s{sI}, 19")
                    E.e(f"s_add_u32 s{sT2}, s{sWo}, s{sT2}")
                E.vmem(f"buffer_load_dwordx4 v{vWD+i}, {s4(SWQ)}, s{sT2} offen offset:{i*1024} lds", f"c{j}")
            ops.append(op)
        return ops
    def ld_xn(j):
        ops = []
        for ks in range(2):
            kb = 2 * j + ks
            for b in range(4):
                def op(E, kb=kb, b=b):
                    if b == 0 and kb % 2 == 0:
                        E.e(f"s_lshl_b32 s{sT}, s{sI}, 13")
                        E.e(f"s_add_u32 s{sT}, s{sXN}, s{sT}")
                    elif b == 0: E.e(f"s_add_u32 s{sT}, s{sT}, 4096")
                    E.vmem(f"buffer_load_dwordx4 {a4(XF(kb,b))}, v{vL16}, {s4(SWS)}, s{sT} offen offset:{b*1024}", f"x{kb}")
                ops.append(op)
        return ops
    def dma_unit0(u):
        ops = []
        for i in range(4):
            def op(E, i=i):
                if i == 0:
                    E.e(f"s_add_u32 m0, s{sWl}, {u*16384}")
                    E.e("s_nop 0")
                E.vmem(f"buffer_load_dwordx4 v{vL16}, {s4(SKV)}, s{sSrc0} offen offset:{i*1024} lds", f"u{u}")
                if i == 3: E.e(f"s_add_u32 s{sSrc0}, s{sSrc0}, 8192")
            ops.append(op)
        return ops
    KEY = 192
    for op in dma_w(0) + ld_xn(0): op(E)
    E.vmem(f"buffer_load_dwordx4 {v4(KEY)}, v{vL16}, {s4(SWS)}, s{sT3} offen", "key")
    E.vmem(f"buffer_load_dwordx4 {v4(KEY+4)}, v{vL16}, {s4(SWS)}, s{sT3} offen offset:1024", "key")
    for op in dma_w(1) + ld_xn(1): op(E)
    if touch:
        E.e(f"v_lshrrev_b32 v{vT}, 4, v{vLane}")
        E.e(f"v_lshlrev_b32 v{vT}, 13, v{vT}")
        E.e(f"v_and_b32 v{vT+1}, 15, v{vLane}")
        E.e(f"v_lshl_add_u32 v{vT}, v{vT+1}, 7, v{vT}")
        E.e(f"s_and_b32 s{sT}, s{sH}, 3")
        E.e(f"s_lshl_b32 s{sT}, s{sT}, 11")
        E.e(f"s_add_u32 s{sT}, s{sT}, s{sXN}")
        E.e(f"s_add_u32 s{sT2}, s{sT}, {2*8192}")
        E.vmem(f"buffer_load_dword v{vT+4}, v{vT}, {s4(SWS)}, s{sT2} offen{tflag}", "t")
        E.e(f"v_and_b32 v{vT}, 0x3fff, v{vT}")
        E.e(f"s_add_u32 s{sT2}, s{sT}, {6*8192}")
        E.vmem(f"buffer_load_dword v{vT+5}, v{vT}, {s4(SWS)}, s{sT2} offen{tflag}", "t")
    srd(E, SKV, 6, wsz()); srd(E, SD, 12, 1376 * 1024)
    E.e(f"v_bfe_u32 v{vT}, v{vLane}, 2, 2")
    E.e(f"v_lshl_add_u32 v{vT+1}, v{vT+2}, 3, v{vT}")
    E.e(f"v_lshlrev_b32 v{vT+1}, 8, v{vT+1}")
    E.e(f"v_and_b32 v{vT+3}, 3, v{vLane}")
    E.e(f"v_lshl_add_u32 v{vT+1}, v{vT+3}, 3, v{vT+1}")
    E.e(f"v_and_b32 v{vT+3}, 1, v{vT+2}")
    E.e(f"v_lshl_add_u32 v{vT}, v{vT+3}, 2, v{vT}")
    E.e(f"v_lshl_add_u32 v{vW}, v{vT}, 5, v{vT+1}")
    E.e(f"v_add_u32 v{vW}, {L_WQ}, v{vW}")
    for c in range(1, 8):
        E.e(f"v_xor_b32 v{vW+c}, {c*32}, v{vW}")
    E.e(f"s_lshl_b32 s{sT}, s{sP}, 1")
    E.e(f"s_sub_u32 s{sT2}, 30, s{sT}")
    E.e(f"s_sub_u32 s{sT}, 3, s{sW}")
    E.e(f"s_min_u32 s{sT}, s{sT}, s{sW}")
    E.e(f"s_add_u32 s{sTgA}, s{sT}, s{sT2}")
    E.e(f"s_lshl_b32 s{sKVh}, s{sH}, 19")
    E.e(f"s_cmp_lt_u32 s{sW}, 2")
    E.e(f"s_mov_b32 s{sT}, {hex(WS_V - 8192)}")
    E.e(f"s_cselect_b32 s{sSrc0}, {hex(WS_K)}, s{sT}")
    E.e(f"s_mov_b32 s{sT}, {hex(WS_V + 8192)}")
    E.e(f"s_cselect_b32 s{sSrc1}, {hex(WS_K)}, s{sT}")
    E.e(f"s_and_b32 s{sT2}, s{sW}, 1")
    E.e(f"s_lshl_b32 s{sT2}, s{sT2}, 12")
    E.e(f"s_add_u32 s{sT}, s{sKVh}, s{sT2}")
    E.e(f"s_add_u32 s{sSrc0}, s{sSrc0}, s{sT}")
    E.e(f"s_add_u32 s{sSrc1}, s{sSrc1}, s{sT}")
    E.e(f"s_lshl_b32 s{sT}, s{sP}, 2")
    E.e(f"s_sub_u32 s{sT2}, 63, s{sT}")
    E.e(f"s_lshl_b32 s{sT2}, s{sT2}, 13")
    E.e(f"s_add_u32 s{sSrc1}, s{sSrc1}, s{sT2}")
    E.e(f"s_add_u32 s{eSw}, s{sT}, 1")
    E.e(f"s_lshl_b32 s{sT2}, s{sW}, 1")
    E.e(f"s_add_u32 s{sT2}, s{sT2}, s{sT}")
    E.e(f"s_sub_u32 s{sT2}, s{sT2}, 4")
    E.e(f"s_cmp_lt_u32 s{sW}, 2")
    E.e(f"s_cselect_b32 s{eDr}, 32, s{sT2}")
    E.e(f"s_mov_b32 s{eP1}, s{eDr}")
    E.e(f"s_add_u32 s{eP2}, s{eDr}, 1")
    E.e(f"s_add_u32 s{eDr}, s{eDr}, 2")
    E.e(f"s_mov_b32 s{ePl}, 100")
    E.e(f"s_cmp_eq_u32 s{sP}, 7")
    E.e(f"s_cselect_b32 s{sT}, 1, 0")
    E.e(f"s_cmp_ge_u32 s{sW}, s{sT}")
    E.e(f"s_cselect_b32 s{sT2}, 1, 0")
    E.e(f"s_cmp_lt_u32 s{sW}, 2")
    E.e(f"s_cselect_b32 s{sT2}, s{sT2}, 0")
    E.e(f"s_cmp_eq_u32 s{sT2}, 1")
    E.e(f"s_cselect_b32 s{eP1}, 100, s{eP1}")
    E.e(f"s_cselect_b32 s{eP2}, 100, s{eP2}")
    E.e(f"s_sub_u32 s{sJ}, 7, s{sP}")
    E.e(f"s_lshl_b32 s{sJ}, s{sJ}, 5")
    E.e(f"s_add_u32 s{sJ}, s{sJ}, s{sH}")
    E.e(f"s_cmp_lt_u32 s{sJ}, {NP}")
    E.e(f"s_cselect_b32 s{eFF}, 4, 100")
    E.e(f"s_mov_b32 s{sDual}, 0")
    E.e(f"s_mov_b32 s{sRP}, s{sWl}")
    E.e(f"s_mov_b32 s{sRd}, 0")
    E.e(f"v_mov_b32 v{vMask}, 0xc000")
    E.e(f"v_mov_b32 v{vRd}, v{vL16}")
    stamp(E, 1)
    E.wait_vm("c0", "x0")
    E.e("s_barrier")
    stamp(E, 2)

    SM0 = 22
    def sm_ops(par):
        ops = []; k = 0
        for a in range(2):
            for b in range(4):
                for r in range(4):
                    reg = Sb(par, a, b) + r
                    ops.append((SM0 + 2 * k, f"v_exp_f32 v{reg}, v{reg}"))
                    if r & 1:
                        ops.append((SM0 + 2 * k + 1, f"v_cvt_pk_bf16_f32 v{Pb(par,b)+a*2+r//2}, v{reg-1}, v{reg}"))
                    k += 1
        return ops
    def sm_list(ops):
        return [tx for tx in ops if "v_exp" in tx] + ["s_nop 0"] + [tx for tx in ops if "v_exp" not in tx]
    def qk_mf(par, zero=False):
        L = []
        for a in range(2):
            for t in range(4):
                for b in range(4):
                    c = ("0" if zero else v4(IN(a, b))) if t == 0 else v4(Sb(par, a, b))
                    L.append(f"{MFMA} {v4(Sb(par,a,b))}, {a4(KF(a*4+t))}, {v4(QV(b,t))}, {c}")
        return L
    ones_mf = lambda pp: [f"{MFMA} {v4(LS(b))}, {v4(ONES)}, {v4(Pb(pp,b))}, {v4(LS(b))}" for b in range(4)]
    pvc_mf = lambda pp, c: [f"{MFMA} {a4(O(c,b))}, {a4(VF(c))}, {v4(Pb(pp,b))}, {a4(O(c,b))}" for b in range(4)]
    def pv_mf(pp):
        L = []
        for c in range(8):
            L += pvc_mf(pp, c)
            if c == 3: L += ones_mf(pp)
        return L
    rdK = lambda i: f"ds_read_b128 {a4(KF(i))}, v{vRd} offset:{i*1024}"
    rdV = lambda c: f"ds_read_b128 {a4(VF(c))}, v{vRd} offset:{8192 + c*1024}"
    def mid(n): return [f"s_waitcnt vmcnt({n}) lgkmcnt(0)", "s_barrier"]
    rd_adv = [f"s_add_u32 s{sRd}, s{sRd}, 0x4000", f"v_bfi_b32 v{vRd}, v{vMask}, s{sRd}, v{vRd}"]
    m0_0 = f"s_mov_b32 m0, s{sRP}"
    m0_1 = f"s_add_u32 m0, s{sRP}, 0x10000"
    rp_adv = [f"s_add_u32 s{sRP}, s{sRP}, 0x4000", f"s_and_b32 s{sRP}, s{sRP}, 0xffff"]
    dma0 = [f"buffer_load_dwordx4 v{vL16}, {s4(SKV)}, s{sSrc0} offen offset:{i*1024} lds" for i in range(4)]
    dma1 = [f"buffer_load_dwordx4 v{vL16}, {s4(SKV)}, s{sSrc1} offen offset:{i*1024} lds" for i in range(4)]
    adv0 = f"s_add_u32 s{sSrc0}, s{sSrc0}, 8192"
    adv1 = f"s_sub_u32 s{sSrc1}, s{sSrc1}, 8192"
    grp1 = [m0_1, "s_nop 0"] + dma1 + [adv1]
    grp0 = [m0_0, "s_nop 0"] + dma0 + [adv0] + rp_adv
    def pattern_ops(kind):
        L = []
        for a in range(2):
            for b in range(4):
                rel = (16 * a + (32 if kind == 2 else 0)) - 16 * b if kind else -1
                for r in range(4):
                    if rel < 0: L.append(f"v_mov_b32 v{IN(a,b)+r}, v{NEGM+b}")
                    elif rel == 0: L.append(f"v_add_f32 v{IN(a,b)+r}, v{NEGM+b}, v{DM+r}")
                    else: L.append(f"v_mov_b32 v{IN(a,b)+r}, {BIGNEG}")
        return L
    def fill(W, ops, s0, s1=None, per=2):
        s1 = len(W.bb) if s1 is None else s1
        g = s0; k = 0; n = 0
        while k < len(ops) and g < s1:
            W.add(g, ops[k], 2); k += 1; n += 1
            if n == per: n = 0; g += 1
        return ops[k:]
    ZR = vT + 8
    zeroO = [f"v_mfma_f32_32x32x16_bf16 a[{16*k}:{16*k+15}], {v4(ZR)}, {v4(ZR)}, 0" for k in range(8)]
    def rowmax_ops(MX):
        L = []
        for b in range(4):
            s0, s1 = Sb(0, 0, b), Sb(0, 1, b)
            L += [f"v_max3_f32 v{MX+b}, v{s0}, v{s0+1}, v{s0+2}", f"v_max3_f32 v{MX+b}, v{MX+b}, v{s0+3}, v{s1}",
                  f"v_max3_f32 v{MX+b}, v{MX+b}, v{s1+1}, v{s1+2}", f"v_max_f32 v{MX+b}, v{MX+b}, v{s1+3}"]
        for sw in ("v_permlane16_swap_b32", "v_permlane32_swap_b32"):
            L += [f"v_mov_b32 v{MX+4+b}, v{MX+b}" for b in range(4)] + ["s_nop 1"]
            L += [f"{sw} v{MX+b}, v{MX+4+b}" for b in range(4)]
            L += [f"v_max_f32 v{MX+b}, v{MX+b}, v{MX+4+b}" for b in range(4)]
        return L

    W = Weave()
    S = Stream(W, lead=20, age=10, maxper=1)
    BARPOS = 46
    ring_last = {}; fi = 0
    for j in range(8):
        ea = -10**9 if j == 0 else (j - 1) * 64 + BARPOS
        for ks in range(2):
            kb = 2 * j + ks
            if kb: pass
            for c in range(8):
                base = len(W.bb)
                r = WF + (fi % 8) * 4
                off = (j % 4) * 16384 + ks * 8192
                S.read(f"wf{fi}", [f"ds_read_b64_tr_b16 {v2(r)}, v{vW+c} offset:{off}", f"ds_read_b64_tr_b16 {v2(r+2)}, v{vW+c} offset:{off+1024}"],
                       base, max(ea, ring_last.get(fi % 8, -10**9)), latest=j * 64 + BARPOS)
                ring_last[fi % 8] = base + 3
                fi += 1
                for b in range(4):
                    W.mf(f"{MFMA} {v4(QT(c,b))}, {v4(r)}, {a4(XF(kb,b))}, {'0' if kb == 0 else v4(QT(c,b))}")
    for m in qk_mf(0, zero=True): W.mf(m)
    for kb in range(1, 16): W.add(kb * 32 - 1, (lambda kb: lambda E: E.wait_vm(f"x{kb}"))(kb), 0)
    for i in range(8):
        S.read(f"k{i}", [rdK(i)], 512 + 4 * i, 7 * 64 + BARPOS, lead=24)
    def spread(ops, s0, s1):
        n = len(ops)
        for k, op in enumerate(ops): W.add(s0 + (k * (s1 - s0)) // n, op)
    def barrier_at(slot, vmtags):
        def f(E):
            E.wait_vm(*vmtags)
            E.e("s_waitcnt lgkmcnt(0)"); E.lg = []
            E.e("s_barrier")
        W.first(slot, f, -2)
    for j in range(8):
        barrier_at(j * 64 + BARPOS, [f"c{j+1}"] if j < 7 else ["u0"])
    spread(dma_w(2) + ld_xn(2) + dma_w(3) + ld_xn(3), 0, 64)
    spread(dma_w(4) + ld_xn(4), 64, 128)
    spread(dma_w(5) + ld_xn(5), 128, 192)
    spread(dma_w(6) + ld_xn(6), 192, 256)
    spread(dma_w(7) + ld_xn(7), 256, 320)
    spread(dma_unit0(0) + dma_unit0(1) + dma_unit0(2) + dma_unit0(3), 320, 384)
    def win2(E):
        for c in range(8): E.e(f"v_add_u32 v{vW+c}, 0x10000, v{vW+c}")
    W.first(3 * 64 + BARPOS, win2, -1)
    D8, M_, TT, PREV, C_, L7, CA = 200, 208, 209, 210, 211, 212, 213
    def wmax(r, t):
        L = []
        for mod in ("quad_perm:[1,0,3,2]", "quad_perm:[2,3,0,1]", "row_half_mirror", "row_mirror"):
            L += [None, f"v_max_u32_dpp v{r}, v{r}, v{r} {mod} row_mask:0xf bank_mask:0xf"]
        for sw in ("v_permlane16_swap_b32", "v_permlane32_swap_b32"):
            L += [f"v_mov_b32 v{t}, v{r}", None, f"{sw} v{r}, v{t}", f"v_max_u32 v{r}, v{r}, v{t}"]
        return L
    def weave_chain(ops, g, per=2):
        n = 0
        for op in ops:
            if op is None:
                g += 2 if n == 0 else 1; g += (1 if n else -1) if False else 0
                n = 0; continue
            W.add(g, op); n += 1
            if n == per: n = 0; g += 1
        return g + 1
    st1 = [lambda E: E.wait_vm("key"), f"v_mov_b32 v{PREV}, 0", f"v_mov_b32 v{C_}, 0", f"v_and_b32 v{L7}, 7, v{vLane}"]
    for rnd in range(8):
        st1 += [f"v_sub_u32 v{D8+k}, v{KEY+k}, v{PREV}" for k in range(8)]
        st1 += [f"v_max3_u32 v{M_}, v{D8}, v{D8+1}, v{D8+2}", f"v_max3_u32 v{TT}, v{D8+3}, v{D8+4}, v{D8+5}",
                f"v_max3_u32 v{M_}, v{M_}, v{D8+6}, v{D8+7}", f"v_max_u32 v{M_}, v{M_}, v{TT}", f"v_cmp_eq_u32 vcc, {rnd}, v{L7}"]
        st1 += wmax(M_, TT)
        st1 += [f"v_add_u32 v{PREV}, v{PREV}, v{M_}", f"v_cndmask_b32 v{C_}, v{C_}, v{PREV}, vcc"]
    st1 += [f"s_lshl_b32 s{sT3}, s{sW}, 5", f"s_add_u32 s{sT3}, s{sT3}, {L_NM}", f"v_lshl_add_u32 v{CA}, v{L7}, 2, s{sT3}"]
    def spaced_chain(ops, g):
        for op in ops:
            if op is not None: W.add(g, op)
            g += 1
        return g
    def dense_chain(ops, g):
        n = 0
        for op in ops:
            if op is None:
                g += 2; n = 0; continue
            W.add(g, op, 2); n += 1
            if n == 2: n = 0; g += 1
        return g + 1
    g = dense_chain(st1, 40)
    assert g < 4 * 64 + BARPOS - 2, g
    g = max(g, 2 * 64 + BARPOS + 1)
    W.add(g, lambda E: E.lds(f"ds_write_b32 v{CA}, v{C_}", "cand"))
    g2 = ((g - BARPOS) // 64 + 1) * 64 + BARPOS + 1
    W.add(g2 - 4, f"v_and_b32 v{CA}, 31, v{vLane}")
    W.add(g2 - 3, f"v_lshlrev_b32 v{CA}, 2, v{CA}")
    W.add(g2 - 2, f"v_add_u32 v{CA}, {L_NM}, v{CA}")
    W.add(g2, lambda E: E.lds(f"ds_read_b32 v{KEY}, v{CA}", "cand2"))
    st2 = [lambda E: E.wait_lg("cand2"), f"v_mov_b32 v{PREV}, 0"]
    for rnd in range(8):
        st2 += [f"v_sub_u32 v{M_}, v{KEY}, v{PREV}", f"v_cmp_eq_u32 vcc, {rnd}, v{L7}"]
        w_ = wmax(M_, TT)[:12]
        st2 += w_
        st2 += [f"v_add_u32 v{PREV}, v{PREV}, v{M_}", f"v_cndmask_b32 v{vKey}, v{vKey}, v{PREV}, vcc"]
    st2 += [f"v_and_b32 v{M_}, 0x7ff, v{vKey}", f"v_sub_u32 v{M_}, 2047, v{M_}",
            f"v_lshrrev_b32 v{vXa}, 6, v{M_}", f"v_lshlrev_b32 v{vXa}, 16, v{vXa}",
            f"v_bfe_u32 v{TT}, v{M_}, 4, 2", f"v_lshl_add_u32 v{vXa}, v{TT}, 10, v{vXa}",
            f"v_and_b32 v{TT}, 15, v{M_}", f"v_lshl_add_u32 v{vXa}, v{TT}, 4, v{vXa}",
            f"v_lshrrev_b32 v{TT}, 4, v{vLane}", f"v_lshl_add_u32 v{vXa}, v{TT}, 8, v{vXa}",
            f"v_lshlrev_b32 v{D8+1}, 10, v{TT}", f"v_and_b32 v{D8+2}, 15, v{vLane}", f"v_lshl_add_u32 v{D8+1}, v{D8+2}, 4, v{D8+1}"]
    g = dense_chain(st2, g2 + 8)
    g = max(g, 5 * 64 + BARPOS + 1, 390)
    assert g < 470, g
    def ffn_loads(E):
        E.e(f"s_cmp_eq_u32 s{eFF}, 100")
        E.e(f"s_cbranch_scc1 {N}_noffl")
        E.e(f"s_mul_i32 s{sT3}, s{sW}, 12288")
        E.e(f"s_lshl_b32 s{sT}, s{sJ}, 15")
        E.e(f"s_add_u32 s{sT}, s{sT}, s{sWl}")
        E.e(f"s_add_u32 s{sT}, s{sT}, {hex(WS_GUF)}")
        for mat in range(2):
            if mat: E.e(f"s_add_u32 s{sT}, s{sT}, 16384")
            for i in range(4):
                E.e(f"buffer_load_dwordx4 {a4(GU(mat,i))}, v{vL16}, {s4(SWS)}, s{sT} offen offset:{i*1024}")
        E.e(f"s_lshl_b32 s{sT}, s{sJ}, 14")
        E.e(f"s_lshl_b32 s{sT2}, s{sW}, 8")
        E.e(f"s_add_u32 s{sT}, s{sT}, s{sT2}")
        for i in range(4):
            E.e(f"s_add_u32 m0, s{sT3}, {L_FW + 8192 + i*1024}")
            E.e(f"s_add_u32 s{sT2}, s{sT}, {i*4096}")
            E.e(f"buffer_load_dwordx4 v{D8+1}, {s4(SD)}, s{sT2} offen lds")
        E.e(f"s_lshl_b32 s{sT}, s{sW}, 14")
        for k in range(4):
            E.e(f"s_add_u32 s{sT2}, s{sT}, {k*4096}")
            E.e(f"buffer_load_dwordx4 {a4(XS(k))}, v{vXa}, {s4(SWS)}, s{sT2} offen")
        E.e(f"{N}_noffl:")
    W.add(g, ffn_loads)
    cnt = {}
    for t in range(4):
        for b in range(4):
            for h in range(4):
                src = QT(2 * t + (h >> 1), b) + (h & 1) * 2
                sl = 480 + 4 * (2 * t + (h >> 1)) + b + 5
                while cnt.get(sl, 0) >= 2: sl += 1
                assert sl < 512 + 4 * t + b - 1, (t, b, h, sl)
                W.add(sl, f"v_cvt_pk_bf16_f32 v{QV(b,t)+h}, v{src}, v{src+1}"); cnt[sl] = cnt.get(sl, 0) + 1
    consts = [f"v_mov_b32 v{ONES+k}, 0x3f803f80" for k in range(4)] + [f"v_mov_b32 v{LS(0)+k}, 0" for k in range(16)]
    consts += [f"v_mov_b32 v{ZR+k}, 0" for k in range(4)]
    consts += [f"v_and_b32 v{vT}, 15, v{vLane}", f"v_lshrrev_b32 v{vT+1}, 4, v{vLane}", f"v_lshlrev_b32 v{vT+1}, 2, v{vT+1}",
               f"v_sub_u32 v{vT}, v{vT}, v{vT+1}", f"v_mov_b32 v{vT+2}, {BIGNEG}"]
    left = fill(W, consts, 512 + 14, 544)
    assert not left
    W.pre(256, lambda E: stamp(E, 3))
    W.pre(512, lambda E: stamp(E, 4))
    S.place(E)
    W.emit(E)
    for r in range(4):
        E.e(f"v_cmp_gt_i32 vcc, {r}, v{vT}")
        E.e("s_nop 1")
        E.e(f"v_cndmask_b32 v{DM+r}, 0, v{vT+2}, vcc")
    put(E, rd_adv)
    put(E, mid(8))
    stamp(E, 5)
    put(E, [rdK(i) for i in range(8)] + [rdV(0), rdV(1)])
    put(E, grp0)
    E.e(f"s_cmp_lg_u32 s{eP1}, 0")
    E.e(f"s_cbranch_scc1 {N}_fill_nomask")
    for r in range(4):
        E.e(f"v_add_f32 v{Sb(0,0,0)+r}, v{Sb(0,0,0)+r}, v{DM+r}")
        E.e(f"v_mov_b32 v{Sb(0,1,0)+r}, {BIGNEG}")
        E.e(f"v_add_f32 v{Sb(0,1,1)+r}, v{Sb(0,1,1)+r}, v{DM+r}")
    E.e(f"{N}_fill_nomask:")
    W = Weave()
    for m in zeroO: W.mf(m)
    MX = vT
    ops = rowmax_ops(MX) + [f"v_sub_f32 v{NEGM+b}, 0, v{MX+b}" for b in range(4)]
    for b in range(4): ops += [f"v_add_f32 v{Sb(0,0,b)+k}, v{Sb(0,0,b)+k}, v{NEGM+b}" for k in range(8)]
    left = fill(W, ops, 0, per=6)
    W.emit(E)
    put(E, left)
    E.e(f"s_lshl_b32 s{sT}, s{sW}, 10")
    E.e(f"s_add_u32 s{sT}, s{sT}, {L_NM}")
    E.e(f"v_add_u32 v{vT+12}, s{sT}, v{vL16}")
    E.e(f"ds_write_b128 v{vT+12}, {v4(NEGM)}")
    sm0 = sm_list([tx for g, tx in sm_ops(0) if g < 68])
    E.e(f"s_cmp_ge_u32 s{sW}, 2")
    E.e(f"s_cbranch_scc1 {N}_noq")
    E.e(f"s_lshl_b32 s{sT}, s{sW}, 14")
    E.e(f"s_add_u32 s{sT}, s{sT}, {L_QX}")
    E.e(f"v_add_u32 v{vT+12}, s{sT}, v{vL16}")
    for k in range(16): E.e(f"ds_write_b128 v{vT+12}, {v4(192+4*k)} offset:{k*1024}")
    E.e(f"{N}_noq:")
    put(E, sm0)
    put(E, pattern_ops(0))
    E.e("s_waitcnt lgkmcnt(0)")
    E.e(f"s_mov_b32 s{sEv}, 1")
    stamp(E, 6)

    E.e(f"{N}_event:")
    E.e(f"s_cmp_lg_u32 s{sEv}, 2")
    E.e(f"s_cbranch_scc1 {N}_ev0")
    E.e(f"s_sub_u32 s{sT}, 3, s{sW}")
    E.e(f"s_lshl_b32 s{sT}, s{sT}, 10")
    E.e(f"s_add_u32 s{sT}, s{sT}, {L_NM}")
    E.e(f"v_add_u32 v{vT+12}, s{sT}, v{vL16}")
    E.e(f"ds_read_b128 {v4(NEGA)}, v{vT+12}")
    E.e("s_waitcnt lgkmcnt(0)")
    E.e(f"{N}_ev0:")
    E.e(f"s_cmp_lt_u32 s{sEv}, 32")
    E.e(f"s_cselect_b32 s{SKV+2}, {hex(wsz())}, 0")
    E.e(f"s_cmp_eq_u32 s{sEv}, s{eDr}")
    E.e(f"s_cbranch_scc1 {N}_drain")
    E.e(f"s_cmp_lg_u32 s{sEv}, s{eSw}")
    E.e(f"s_cbranch_scc1 {N}_ev1")
    E.e("s_waitcnt vmcnt(8)")
    stamp(E, 7)
    E.e(f"s_mov_b32 s{sDual}, 1")
    E.e(f"{N}_ev1:")
    for kind, ev, nxt in ((1, eP1, "ev2"), (2, eP2, "ev3"), (0, ePl, "ev4")):
        E.e(f"s_cmp_lg_u32 s{sEv}, s{ev}")
        E.e(f"s_cbranch_scc1 {N}_{nxt}")
        put(E, pattern_ops(kind))
        E.e(f"{N}_{nxt}:")
    E.e(f"s_cmp_eq_u32 s{sEv}, s{eFF}")
    E.e(f"s_cbranch_scc1 {N}_ffn")
    E.e(f"{N}_ev6:")
    E.e(f"s_cmp_lt_u32 s{sEv}, 32")
    E.e(f"s_cselect_b32 s{sT}, 32, 100")
    E.e(f"s_min_u32 s{sT}, s{sT}, s{eDr}")
    E.e(f"s_cmp_lt_u32 s{sEv}, 2")
    E.e(f"s_cselect_b32 s{sT}, 2, s{sT}")
    for ev in (eSw, eP1, eP2, ePl, eFF):
        E.e(f"s_cmp_gt_u32 s{ev}, s{sEv}")
        E.e(f"s_cselect_b32 s{sT2}, s{ev}, 100")
        E.e(f"s_min_u32 s{sT}, s{sT}, s{sT2}")
    E.e(f"s_sub_u32 s{sCnt}, s{sT}, s{sEv}")
    E.e(f"s_sub_u32 s{sCnt}, s{sCnt}, 1")
    E.e(f"s_and_b32 s{sT2}, s{sEv}, 1")
    E.e(f"s_mov_b32 s{sEv}, s{sT}")
    E.e(f"s_cmp_eq_u32 s{sDual}, 1")
    E.e(f"s_cbranch_scc1 {N}_ev5")
    E.e(f"s_cmp_eq_u32 s{sT2}, 1")
    E.e(f"s_cbranch_scc1 {N}_O1")
    E.e(f"s_branch {N}_E1")
    E.e(f"{N}_ev5:")
    E.e(f"s_cmp_eq_u32 s{sT2}, 1")
    E.e(f"s_cbranch_scc1 {N}_O2")
    E.e(f"s_branch {N}_E2")

    def full_body(E, par, dual):
        W = Weave()
        for m in qk_mf(par) + pv_mf(par ^ 1): W.mf(m)
        for g, tx in sm_ops(par):
            if g < 68: W.add(g, tx)
        for g, tx in sm_ops(par ^ 1):
            if g >= 68: W.add(g - 68, tx)
        W.pre(0, "s_waitcnt lgkmcnt(2)")
        for c, g in zip(range(2, 8), (1, 3, 5, 9, 13, 17)): W.add(g, rdV(c))
        if dual:
            W.add(3, m0_1)
            for i, g in enumerate((7, 11, 15, 19)): W.add(g, dma1[i])
            W.add(20, adv1)
        W.add(18, rd_adv[0]); W.add(21, rd_adv[1])
        W.add(23, m0_0)
        for x in mid(16 if dual else 8): W.pre(32, x)
        for i, g in enumerate((33, 35, 37, 39, 41, 45, 49, 53)): W.add(g, rdK(i))
        W.add(57, rdV(0)); W.add(61, rdV(1))
        for i, g in enumerate((43, 47, 51, 55)): W.add(g, dma0[i])
        W.add(59, adv0); W.add(59, rp_adv[0]); W.add(63, rp_adv[1])
        W.add(63, f"s_sub_u32 s{sCnt}, s{sCnt}, 1")
        W.emit(E)
        E.e(f"s_cbranch_scc1 {N}_event")
    marks = {}
    for dual in (0, 1):
        E.e(".p2align 6")
        marks[("O", dual)] = len(E.L)
        E.e(f"{N}_O{dual+1}:")
        full_body(E, 1, dual)
        E.e(f"{N}_E{dual+1}:")
        full_body(E, 0, dual)
        E.e(f"s_branch {N}_O{dual+1}")
        marks[("X", dual)] = len(E.L)

    RV = vT
    def lcheck(E, lab):
        E.e(f"v_add_f32 v{vT+5}, v{LS(0)}, v{LS(1)}")
        E.e(f"v_add_f32 v{vT+4}, v{LS(2)}, v{LS(3)}")
        E.e(f"v_add_f32 v{vT+4}, v{vT+4}, v{vT+5}")
        E.e(f"v_mov_b32 v{vT+5}, {lthr}")
        E.e(f"v_cmp_nlt_f32 vcc, v{vT+4}, v{vT+5}")
        E.e("s_nop 4")
        E.e(f"s_cbranch_vccz {lab}")
    def norm_ops(t, b, tmp, sbase, pre=True, add=None):
        L = []
        if pre:
            for h in range(2):
                L += [f"v_accvgpr_read_b32 v{tmp+h*4+r}, a{O(2*t+h,b)+r}" for r in range(4)]
        if add is not None:
            for h in range(2):
                L += [f"v_pk_add_f32 {v2(tmp+h*4+r)}, {v2(tmp+h*4+r)}, {v2(add(2*t+h,b)+r)}" for r in (0, 2)]
        L += [f"v_mul_f32 v{tmp+r}, v{tmp+r}, v{RV+b}" for r in range(8)]
        L += [f"v_cvt_pk_bf16_f32 v{tmp+r}, v{tmp+2*r}, v{tmp+2*r+1}" for r in range(4)]
        if b == 0: L.append(f"s_add_u32 s{sT3}, s{sbase}, {t*4096}")
        L.append(f"buffer_store_dwordx4 {v4(tmp)}, v{vL16}, {s4(SWS)}, s{sT3} offen offset:{b*1024}{stflag}")
        return L
    def ctx_base(E, sTg):
        E.e(f"s_lshl_b32 s{sT}, s{sH}, 14")
        E.e(f"s_add_u32 s{sT}, s{sT}, {hex(WS_CTX)}")
        E.e(f"s_lshl_b32 s{sTg}, s{sTg}, 19")
        E.e(f"s_add_u32 s{sTg}, s{sTg}, s{sT}")
    E.e(f"{N}_drain:")
    put(E, [rdV(c) for c in range(2, 8)])
    put(E, sm_list([tx for g, tx in sm_ops(1) if g >= 68]))
    E.e(f"s_cmp_eq_u32 s{eDr}, 34")
    E.e(f"s_cbranch_scc1 {N}_final")
    put(E, ones_mf(1))
    put(E, grp1)
    put(E, rd_adv)
    lcheck(E, f"{N}_dr_ok")
    E.e(f"s_lshl_b32 s{sNB}, s{sTgO}, 1")
    E.e(f"s_add_u32 s{sNB}, s{sNB}, 2")
    E.e(f"s_call_b64 s[{sRet}:{sRet+1}], {N}_slow")
    E.e(f"{N}_dr_ok:")
    put(E, [f"v_rcp_f32 v{RV+b}, v{LS(b)}" for b in range(4)])
    E.e(f"s_sub_u32 s{sT}, 3, s{sW}")
    E.e(f"s_lshl_b32 s{sT}, s{sT}, 14")
    E.e(f"s_add_u32 s{sT}, s{sT}, {L_QX}")
    E.e(f"v_add_u32 v{vT+12}, s{sT}, v{vL16}")
    for k in range(16): E.e(f"ds_read_b128 {v4(192+4*k)}, v{vT+12} offset:{k*1024}")
    put(E, [f"v_mov_b32 v{NEGM+k}, v{NEGA+k}" for k in range(4)])
    put(E, [f"v_mov_b32 v{LS(0)+k}, 0" for k in range(16)])
    put(E, pattern_ops(2))
    ctx_base(E, sTgO)
    put(E, mid(16))
    stamp(E, 8)
    frags = [(t, b) for t in range(4) for b in range(4)]
    nops = [norm_ops(t, b, 32 + (k % 4) * 8, sTgO) for k, (t, b) in enumerate(frags)]
    W = Weave()
    for c in range(8):
        for m in pvc_mf(1, c): W.mf(m)
    left = fill(W, grp0, 0, 12, per=1)
    assert not left
    N1 = 8
    left = fill(W, sum(nops[:N1], []), 13, per=2)
    W.emit(E)
    put(E, left)
    put(E, grp1)
    E.e(f"v_or_b32 v{vRd}, 0x10000, v{vRd}")
    E.e(f"s_add_u32 s{sRd}, s{sRd}, 0x4000")
    put(E, rd_adv)
    put(E, mid(16))
    put(E, [rdK(i) for i in range(8)])
    put(E, grp0)
    N2 = 13
    put(E, sum(nops[N1:N2], []))
    stamp(E, 9)
    E.e(f"s_add_u32 s{sEv}, s{eDr}, 3")
    E.e(f"s_mov_b32 s{eP1}, s{sEv}")
    E.e(f"s_add_u32 s{ePl}, s{eDr}, 4")
    E.e(f"s_mov_b32 s{eP2}, 100")
    E.e(f"s_cmp_eq_u32 s{eDr}, 32")
    E.e(f"s_mov_b32 s{eDr}, 34")
    E.e(f"s_cbranch_scc1 {N}_idle34")
    put(E, grp1)
    E.e("s_waitcnt lgkmcnt(0)")
    W = Weave()
    for m in qk_mf(0): W.mf(m)
    left = fill(W, sum(nops[N2:], []), 0, per=2)
    W.emit(E)
    put(E, left)
    put(E, rd_adv)
    put(E, mid(16))
    put(E, [rdK(i) for i in range(8)] + [rdV(0), rdV(1)])
    put(E, grp0)
    W = Weave()
    for m in zeroO: W.mf(m)
    left = fill(W, sm0, 0, per=3)
    W.emit(E)
    put(E, left)
    E.e(f"s_branch {N}_event")

    E.e(f"{N}_idle34:")
    put(E, sum(nops[N2:], []))
    put(E, zeroO)
    put(E, [f"v_mov_b32 v{Pb(1,0)+k}, 0" for k in range(16)])
    E.e("s_nop 7")
    E.e(f"{N}_final:")
    stamp(E, 10)
    put(E, ones_mf(1))
    E.e(f"s_lshl_b32 s{sT}, s{sW}, 14")
    E.e(f"v_add_u32 v{vT+8}, s{sT}, v{vL16}")
    E.e(f"s_sub_u32 s{sT2}, 3, s{sW}")
    E.e(f"s_lshl_b32 s{sT}, s{sT2}, 14")
    E.e(f"v_add_u32 v{vT+9}, s{sT}, v{vL16}")
    E.e(f"s_lshl_b32 s{sT}, s{sW}, 10")
    E.e(f"s_add_u32 s{sT}, s{sT}, 65536")
    E.e(f"v_add_u32 v{vT+10}, s{sT}, v{vL16}")
    E.e(f"s_lshl_b32 s{sT}, s{sT2}, 10")
    E.e(f"s_add_u32 s{sT}, s{sT}, 65536")
    E.e(f"v_add_u32 v{vT+11}, s{sT}, v{vL16}")
    E.e(f"s_lshl_b32 s{sNB}, s{sTgA}, 1")
    E.e(f"s_add_u32 s{sNB}, s{sNB}, 2")
    ctx_base(E, sTgA)
    put(E, [f"v_mov_b32 v{NEGM+b}, v{LS(b)}" for b in range(4)])
    put(E, mid(0))
    E.e(f"ds_write_b128 v{vT+10}, {v4(NEGM)}")
    E.e(f"s_cmp_ge_u32 s{sW}, 2")
    E.e(f"s_cbranch_scc1 {N}_merge_hi")
    for keep in (0, 1):
        if keep: E.e(f"{N}_merge_hi:")
        snd = 1 - keep
        W = Weave()
        for c in list(range(4 * snd, 4 * snd + 4)) + list(range(4 * keep, 4 * keep + 4)):
            for m in pvc_mf(1, c): W.mf(m)
        for k in range(16): W.add(min(31, k + 9 + (k >> 1)), f"ds_write_b128 v{vT+8}, {a4(64*snd + 4*k)} offset:{k*1024}")
        W.emit(E)
        stamp(E, 11)
        E.e("s_waitcnt lgkmcnt(0)")
        E.e("s_barrier")
        E.e(f"ds_read_b128 {v4(NEGA)}, v{vT+11}")
        for k in range(16): E.e(f"ds_read_b128 {v4(4*k)}, v{vT+9} offset:{k*1024}")
        fr = [(t, b) for t in (2 * keep, 2 * keep + 1) for b in range(4)]
        TB = lambda k: 64 + 8 * k
        E.e(f"{N}_mrd{keep}:")
        for k, (t, b) in enumerate(fr):
            for h in range(2):
                put(E, [f"v_accvgpr_read_b32 v{TB(k)+h*4+r}, a{O(2*t+h,b)+r}" for r in range(4)])
        E.e("s_waitcnt lgkmcnt(0)")
        put(E, [f"v_add_f32 v{LS(b)}, v{NEGM+b}, v{NEGA+b}" for b in range(4)])
        lcheck(E, f"{N}_mok{keep}")
        E.e(f"s_cmp_eq_u32 s{sNB}, 0")
        E.e(f"s_cbranch_scc1 {N}_mok{keep}")
        E.e(f"s_call_b64 s[{sRet}:{sRet+1}], {N}_slow")
        put(E, [f"v_mov_b32 v{k}, 0" for k in range(64)])
        put(E, [f"v_mov_b32 v{NEGM+b}, v{LS(b)}" for b in range(4)])
        put(E, [f"v_mov_b32 v{NEGA+b}, 0" for b in range(4)])
        E.e(f"s_mov_b32 s{sNB}, 0")
        E.e(f"s_branch {N}_mrd{keep}")
        E.e(f"{N}_mok{keep}:")
        put(E, [f"v_rcp_f32 v{RV+b}, v{LS(b)}" for b in range(4)])
        for k, (t, b) in enumerate(fr):
            put(E, norm_ops(t, b, TB(k), sTgA, pre=False, add=lambda c, b: O(c, b) - 64 * keep))
        if PROF["on"]:
            stamp(E, 12)
            E.e("s_waitcnt vmcnt(0)")
        stamp_flush(E, 2, 4, SWS, sW, 0)
        E.e("s_endpgm")

    E.e(f"{N}_ffn:")
    E.e(f"s_mul_i32 s{sT3}, s{sW}, 12288")
    E.e(f"s_add_u32 s{sT3}, s{sT3}, {L_FW}")
    for k in range(4):
        for mat in range(2):
            a = v4(64 + 4 * mat)
            E.e(f"{MFMA} {a}, {a4(GU(mat,k))}, {a4(XS(k))}, {'0' if k == 0 else a}")
    E.e(f"v_and_b32 v{vT+1}, 3, v{vLane}")
    E.e(f"v_lshrrev_b32 v{vT+2}, 2, v{vLane}")
    E.e(f"v_lshlrev_b32 v{vT+2}, 8, v{vT+2}")
    E.e(f"v_lshl_add_u32 v{vT+2}, v{vT+1}, 3, v{vT+2}")
    E.e(f"v_add_u32 v{vT+2}, s{sT3}, v{vT+2}")
    E.e(f"s_lshl_b32 s{sT}, s{sW}, 11")
    E.e(f"s_add_u32 s{sT}, s{sT}, {L_FR}")
    E.e(f"v_add_u32 v{vT+3}, s{sT}, v{vL16}")
    E.e(f"v_add_u32 v{vT+4}, {L_FR}, v{vL16}")
    E.e(f"ds_write_b128 v{vT+3}, {v4(64)}")
    E.e(f"ds_write_b128 v{vT+3}, {v4(68)} offset:1024")
    for mt in range(8): E.e(f"ds_read_b64_tr_b16 {v2(2*mt)}, v{vT+2} offset:{8192 + mt*32}")
    E.e("s_waitcnt lgkmcnt(0)")
    E.e("s_barrier")
    for w in range(2):
        E.e(f"ds_read_b128 {v4(16+8*w)}, v{vT+4} offset:{w*2048}")
        E.e(f"ds_read_b128 {v4(20+8*w)}, v{vT+4} offset:{w*2048+1024}")
    for w in range(2):
        E.e(f"ds_read_b128 {v4(64+8*w)}, v{vT+4} offset:{(w+2)*2048}")
        E.e(f"ds_read_b128 {v4(68+8*w)}, v{vT+4} offset:{(w+2)*2048+1024}")
    E.e("s_waitcnt lgkmcnt(0)")
    for k in range(8): E.e(f"v_add_f32 v{16+k}, v{16+k}, v{24+k}")
    for k in range(8): E.e(f"v_add_f32 v{64+k}, v{64+k}, v{72+k}")
    for k in range(8): E.e(f"v_add_f32 v{16+k}, v{16+k}, v{64+k}")
    for k in range(4): E.e(f"v_cvt_pk_bf16_f32 v{24+k}, v{16+k}, v{20+k}")
    for k in range(4):
        E.e(f"v_lshlrev_b32 v{16+k}, 16, v{24+k}")
        E.e(f"v_and_b32 v{20+k}, 0xffff0000, v{24+k}")
    for k in range(4): E.e(f"v_mul_f32 v{24+k}, 0xbfb8aa3b, v{16+k}")
    for k in range(4): E.e(f"v_exp_f32 v{24+k}, v{24+k}")
    for k in range(4): E.e(f"v_add_f32 v{24+k}, 1.0, v{24+k}")
    for k in range(4): E.e(f"v_rcp_f32 v{24+k}, v{24+k}")
    for k in range(4): E.e(f"v_mul_f32 v{16+k}, v{16+k}, v{24+k}")
    for k in range(2): E.e(f"v_cvt_pk_bf16_f32 v{24+k}, v{16+2*k}, v{17+2*k}")
    for k in range(2):
        E.e(f"v_lshlrev_b32 v{16+2*k}, 16, v{24+k}")
        E.e(f"v_and_b32 v{17+2*k}, 0xffff0000, v{24+k}")
    for k in range(4): E.e(f"v_mul_f32 v{16+k}, v{16+k}, v{20+k}")
    for k in range(2): E.e(f"v_cvt_pk_bf16_f32 v{vT+6+k}, v{16+2*k}, v{17+2*k}")
    E.e(f"v_and_b32 v{vT}, 15, v{vLane}")
    E.e(f"v_cmp_gt_u32 vcc, 8, v{vT}")
    E.e(f"v_lshlrev_b32 v{vT}, 11, v{vT}")
    E.e(f"v_lshrrev_b32 v{vT+1}, 4, v{vLane}")
    E.e(f"v_lshl_add_u32 v{vT}, v{vT+1}, 4, v{vT}")
    E.e(f"v_mov_b32 v{vT+1}, 0x7fff0000")
    E.e(f"v_cndmask_b32 v{vT}, v{vT+1}, v{vT}, vcc")
    YR = lambda mt: (16 + 4 * mt) if mt < 4 else (64 + 4 * (mt - 4))
    for mt in range(8): E.e(f"v_mfma_f32_16x16x16_bf16 {v4(YR(mt))}, {v2(2*mt)}, {v2(vT+6)}, 0")
    E.e(f"s_lshl_b32 s{sT}, s{sJ}, 14")
    E.e(f"s_lshl_b32 s{sT2}, s{sW}, 9")
    E.e(f"s_add_u32 s{sT}, s{sT}, s{sT2}")
    E.e(f"s_add_u32 s{sT}, s{sT}, {hex(WS_YP)}")
    for mt in range(8): E.e(f"buffer_store_dwordx4 {v4(YR(mt))}, v{vT}, {s4(SWS)}, s{sT} offen offset:{mt*64}")
    E.e(f"s_or_b32 s{sT}, s{sJ}, s{sW}")
    E.e(f"s_cmp_lg_u32 s{sT}, 0")
    E.e(f"s_cbranch_scc1 {N}_ev6")
    E.e(f"v_and_b32 v{vT}, 7, v{vLane}")
    E.e(f"v_lshlrev_b32 v{vT}, 2, v{vT}")
    E.e(f"s_mov_b32 s{sT}, {hex(WS_IDX)}")
    E.e(f"buffer_store_dword v{vKey}, v{vT}, {s4(SWS)}, s{sT} offen")
    E.e(f"s_branch {N}_ev6")

    E.e(f"{N}_slow:")
    MR = vT + 4
    E.e("s_waitcnt vmcnt(0) lgkmcnt(0)")
    put(E, [f"v_mov_b32 v{ZR+k}, 0" for k in range(4)])
    put(E, [f"v_mov_b32 v{MR+b}, {BIGNEG}" for b in range(4)])
    put(E, [f"v_mov_b32 v{NEGM+b}, 0" for b in range(4)])
    put(E, [f"v_mov_b32 v{LS(0)+k}, 0" for k in range(16)])
    put(E, zeroO)
    put(E, pattern_ops(0))
    E.e(f"s_mov_b32 s{sI}, 0")
    E.e(f"{N}_sl_loop:")
    E.e(f"s_lshl_b32 s{sT}, s{sI}, 13")
    E.e(f"s_add_u32 s{sT}, s{sT}, s{sKVh}")
    for half in range(2):
        E.e(f"s_add_u32 s{sT2}, s{sT}, {hex(WS_K + half*4096)}")
        for i in range(4): E.e(f"buffer_load_dwordx4 {a4(KF(half*4+i))}, v{vL16}, {s4(SWS)}, s{sT2} offen offset:{i*1024}")
    for half in range(2):
        E.e(f"s_add_u32 s{sT2}, s{sT}, {hex(WS_V + half*4096)}")
        for i in range(4): E.e(f"buffer_load_dwordx4 {a4(VF(half*4+i))}, v{vL16}, {s4(SWS)}, s{sT2} offen offset:{i*1024}")
    E.e(f"s_add_u32 s{sT}, s{sI}, 2")
    E.e(f"s_cmp_lg_u32 s{sT}, s{sNB}")
    E.e(f"s_cbranch_scc1 {N}_sl1")
    put(E, pattern_ops(1))
    E.e(f"{N}_sl1:")
    E.e(f"s_add_u32 s{sT}, s{sI}, 1")
    E.e(f"s_cmp_lg_u32 s{sT}, s{sNB}")
    E.e(f"s_cbranch_scc1 {N}_sl2")
    put(E, pattern_ops(2))
    E.e(f"{N}_sl2:")
    E.e("s_waitcnt vmcnt(0)")
    put(E, qk_mf(0))
    E.e("s_nop 7")
    put(E, rowmax_ops(32))
    put(E, [f"v_max_f32 v{32+b}, v{32+b}, v{MR+b}" for b in range(4)])
    put(E, [f"v_sub_f32 v{40+b}, v{MR+b}, v{32+b}" for b in range(4)])
    put(E, [f"v_exp_f32 v{40+b}, v{40+b}" for b in range(4)])
    put(E, [f"v_mov_b32 v{MR+b}, v{32+b}" for b in range(4)])
    for b in range(4): put(E, [f"v_sub_f32 v{Sb(0,0,b)+k}, v{Sb(0,0,b)+k}, v{MR+b}" for k in range(8)])
    put(E, sm_list([tx for g, tx in sm_ops(0)]))
    for b in range(4): put(E, [f"v_mul_f32 v{LS(b)+r}, v{LS(b)+r}, v{40+b}" for r in range(4)])
    for c in range(8):
        for b in range(4):
            put(E, [f"v_accvgpr_read_b32 v{44+r}, a{O(c,b)+r}" for r in range(4)])
            put(E, [f"v_mul_f32 v{44+r}, v{44+r}, v{40+b}" for r in range(4)])
            put(E, [f"v_accvgpr_write_b32 a{O(c,b)+r}, v{44+r}" for r in range(4)])
    E.e("s_nop 1")
    put(E, pv_mf(0))
    E.e(f"s_add_u32 s{sI}, s{sI}, 1")
    E.e(f"s_cmp_lt_u32 s{sI}, s{sNB}")
    E.e("s_nop 7")
    E.e(f"s_cbranch_scc1 {N}_sl_loop")
    put(E, [f"v_mov_b32 v{Pb(1,0)+k}, 0" for k in range(16)])
    E.e(f"s_setpc_b64 s[{sRet}:{sRet+1}]")
    E.e(f"{N}_end:")
    E.e("s_endpgm")
    for p in check(E.L, name): print("HAZARD", p)
    for dual in (0, 1):
        body = E.L[marks[("O", dual)]:marks[("X", dual)]]
        for p in check(body + body, name + f" loop{dual}"): print("HAZARD", p)
    return head(name) + E.text(), kd(name, 512, 256, 102)

if __name__ == "__main__":
    t, k = gen_k2()
    print(len(t.splitlines()))
```

```python
from common import *

def gen_k3(name="k3_kernel", rot=(0, 0)):
    E = Em()
    SX, SWS, SO = 20, 24, 28
    sW, sTg, sMg, sT, sT2, sA, sB = 32, 33, 34, 35, 36, 37, 38
    sIDX = 40
    sG, sK, sSl, sRet, SYP = 48, 49, 50, 52, 56
    sRot, sJ = 60, 61
    ACC = 0
    RING = 64
    vL16, vLane, vT = 192, 193, 194
    vX, vXN = 200, 204
    vRow, vCg = 208, 209
    vY = 212
    vSig = 220
    DEPTH = 4
    E.e("s_cmp_ge_u32 s2, 256")
    E.e(f"s_cbranch_scc1 {name}_end")
    stamp_init(E)
    E.e("s_load_dwordx2 s[4:5], s[0:1], 0")
    E.e("s_load_dwordx2 s[6:7], s[0:1], 88")
    E.e("s_load_dwordx2 s[8:9], s[0:1], 104")
    E.e(f"v_and_b32 v{vLane}, 63, v0")
    E.e(f"v_lshrrev_b32 v{vT}, 6, v0")
    E.e(f"v_lshlrev_b32 v{vL16}, 4, v{vLane}")
    E.e(f"v_readfirstlane_b32 s{sW}, v{vT}")
    E.e(f"v_lshrrev_b32 v{vRow}, 3, v0")
    E.e(f"v_and_b32 v{vCg}, 7, v0")
    E.e(f"s_and_b32 s{sT}, s2, 7")
    E.e(f"s_lshr_b32 s{sT2}, s2, 3")
    E.e(f"s_and_b32 s{sMg}, s{sT2}, 7")
    E.e(f"s_lshr_b32 s{sT2}, s{sT2}, 3")
    E.e(f"s_lshl_b32 s{sTg}, s{sT}, 2")
    E.e(f"s_add_u32 s{sTg}, s{sTg}, s{sT2}")
    E.e(f"s_lshl_b32 s{sT}, s{sW}, 16")
    E.e(f"s_lshl_b32 s{sA}, s{sMg}, 19")
    E.e(f"s_add_u32 s{sA}, s{sA}, s{sT}")
    E.e(f"s_add_u32 s{sA}, s{sA}, {hex(WS_WOF)}")
    E.e(f"s_lshl_b32 s{sB}, s{sTg}, 19")
    E.e(f"s_add_u32 s{sB}, s{sB}, s{sT}")
    E.e(f"s_add_u32 s{sB}, s{sB}, {hex(WS_CTX)}")
    E.e(f"s_mul_i32 s{sRot}, s{sMg}, {rot[0]}")
    E.e(f"s_mul_i32 s{sJ}, s{sTg}, {rot[1]}")
    E.e(f"s_add_u32 s{sRot}, s{sRot}, s{sJ}")
    E.e("s_waitcnt lgkmcnt(0)")
    srd(E, SX, 4, 0x200000); ws_shift(E, 8); srd(E, SWS, 8, wsz()); srd(E, SO, 6, 0x200000)
    E.e(f"s_add_u32 s12, s8, {hex(WS_YP)}")
    E.e(f"s_addc_u32 s13, s9, 0")
    srd(E, SYP, 12, NP * 16384)
    E.e(f"s_add_u32 s10, s8, {hex(WS_IDX)}")
    E.e(f"s_addc_u32 s11, s9, 0")
    E.e(f"s_load_dwordx8 s[{sIDX}:{sIDX+7}], s[10:11], 0")
    RA = lambda ks, t: RING + ((ks % DEPTH) * 8 + t) * 4
    RB = lambda ks, t: RING + ((ks % DEPTH) * 8 + 4 + t) * 4
    def loads(ks):
        ops = []
        for t in range(4):
            def opb(E, t=t):
                if t == 0:
                    E.e(f"s_add_u32 s{sJ}, s{sRot}, {ks}")
                    E.e(f"s_and_b32 s{sJ}, s{sJ}, 15")
                    E.e(f"s_lshl_b32 s{sJ}, s{sJ}, 12")
                    E.e(f"s_add_u32 s{sT2}, s{sB}, s{sJ}")
                E.vmem(f"buffer_load_dwordx4 {v4(RB(ks,t))}, v{vL16}, {s4(SWS)}, s{sT2} offen offset:{t*1024}", f"k{ks}")
            ops.append(opb)
        for t in range(4):
            def opa(E, t=t):
                if t == 0: E.e(f"s_add_u32 s{sT}, s{sA}, s{sJ}")
                E.vmem(f"buffer_load_dwordx4 {v4(RA(ks,t))}, v{vL16}, {s4(SWS)}, s{sT} offen offset:{t*1024}", f"k{ks}")
            ops.append(opa)
        return ops
    for ks in range(DEPTH):
        for op in loads(ks): op(E)
    for k in range(8): E.e(f"v_mov_b32 v{vY+k}, 0")
    E.e("s_waitcnt lgkmcnt(0)")
    E.e(f"s_lshl_b32 s{sG}, s{sTg}, 3")
    E.e(f"s_add_u32 s{sG}, s{sG}, s{sW}")
    NIT = (NP + 7) // 8
    YT = 0
    for k in range(8):
        E.e(f"s_and_b32 s{sT}, s{sIDX+k}, 0xffff")
        E.e(f"s_sub_u32 s{sT}, 2047, s{sT}")
        E.e(f"s_lshr_b32 s{sT2}, s{sT}, 3")
        E.e(f"s_cmp_lg_u32 s{sT2}, s{sG}")
        E.e(f"s_cbranch_scc1 {name}_nu{k}")
        E.e(f"s_mov_b32 s{sK}, s{sIDX+k}")
        E.e(f"s_movk_i32 s{sSl}, {k*2048}")
        E.e(f"s_getpc_b64 s[{sRet}:{sRet+1}]")
        E.e(f"s_branch {name}_upd")
        E.e(f"{name}_nu{k}:")
    E.e(f"s_branch {name}_main")
    E.e(f"{name}_upd:")
    E.e(f"v_lshrrev_b32 v{vT+3}, 3, v{vLane}")
    E.e(f"v_lshlrev_b32 v{vT+4}, 14, v{vT+3}")
    E.e(f"v_lshl_add_u32 v{vT+4}, v{vCg}, 5, v{vT+4}")
    E.e(f"s_lshl_b32 s{sT2}, s{sMg}, 8")
    E.e(f"s_add_u32 s{sSl}, s{sSl}, s{sT2}")
    NB1 = min(NIT, 8)
    def yload(it, slot):
        E.e(f"buffer_load_dwordx4 {v4(YT+8*slot)}, v{vT+4}, {s4(SYP)}, s{sSl} offen")
        E.e(f"buffer_load_dwordx4 {v4(YT+8*slot+4)}, v{vT+4}, {s4(SYP)}, s{sSl} offen offset:16")
        E.e(f"s_add_u32 s{sSl}, s{sSl}, {8*16384}")
    for it in range(NB1): yload(it, it)
    for it in range(NB1, NIT): yload(it, 28 + it - NB1)
    E.e(f"s_and_b32 s{sT2}, s{sK}, 0xffff0000")
    E.e(f"v_mov_b32 v{vSig}, s{sT2}")
    E.e(f"v_ashrrev_i32 v{vT+5}, 31, v{vSig}")
    E.e(f"v_not_b32 v{vT+5}, v{vT+5}")
    E.e(f"v_or_b32 v{vT+5}, 0x80000000, v{vT+5}")
    E.e(f"v_xor_b32 v{vSig}, v{vSig}, v{vT+5}")
    E.e(f"v_and_b32 v{vSig}, 0xffff0000, v{vSig}")
    E.e(f"v_mul_f32 v{vSig}, 0xbfb8aa3b, v{vSig}")
    E.e(f"v_exp_f32 v{vSig}, v{vSig}")
    E.e("s_nop 0")
    E.e(f"v_add_f32 v{vSig}, 1.0, v{vSig}")
    E.e(f"v_rcp_f32 v{vSig}, v{vSig}")
    E.e("s_nop 0")
    E.e(f"v_cvt_pk_bf16_f32 v{vSig}, v{vSig}, v{vSig}")
    E.e(f"v_lshlrev_b32 v{vSig}, 16, v{vSig}")
    E.e("s_waitcnt vmcnt(0)")
    for it in range(1, NIT):
        slot = it if it < NB1 else 28 + it - NB1
        for k in range(8): E.e(f"v_add_f32 v{YT+k}, v{YT+k}, v{YT+8*slot+k}")
    E.e("s_nop 1")
    for k in range(8): E.e(f"v_add_f32_dpp v{YT+k}, v{YT+k}, v{YT+k} row_ror:8 row_mask:0xf bank_mask:0xf")
    for sw in ("v_permlane16_swap_b32", "v_permlane32_swap_b32"):
        for k in range(8): E.e(f"v_mov_b32 v{YT+8+k}, v{YT+k}")
        E.e("s_nop 1")
        for k in range(8): E.e(f"{sw} v{YT+k}, v{YT+8+k}")
        for k in range(8): E.e(f"v_add_f32 v{YT+k}, v{YT+k}, v{YT+8+k}")
    for k in range(4): E.e(f"v_cvt_pk_bf16_f32 v{YT+8+k}, v{YT+2*k}, v{YT+2*k+1}")
    for k in range(4):
        E.e(f"v_lshlrev_b32 v{YT+2*k}, 16, v{YT+8+k}")
        E.e(f"v_and_b32 v{YT+2*k+1}, 0xffff0000, v{YT+8+k}")
    for k in range(8): E.e(f"v_mul_f32 v{YT+k}, v{YT+k}, v{vSig}")
    for k in range(4): E.e(f"v_cvt_pk_bf16_f32 v{YT+8+k}, v{YT+2*k}, v{YT+2*k+1}")
    for k in range(4):
        E.e(f"v_lshlrev_b32 v{YT+2*k}, 16, v{YT+8+k}")
        E.e(f"v_and_b32 v{YT+2*k+1}, 0xffff0000, v{YT+8+k}")
    E.e(f"s_and_b32 s{sT}, s{sT}, 7")
    E.e(f"v_cmp_eq_u32 vcc, s{sT}, v{vT+3}")
    E.e("s_nop 1")
    for k in range(8): E.e(f"v_cndmask_b32 v{vY+k}, v{vY+k}, v{YT+k}, vcc")
    E.e(f"s_add_u32 s{sRet}, s{sRet}, 4")
    E.e(f"s_addc_u32 s{sRet+1}, s{sRet+1}, 0")
    E.e(f"s_setpc_b64 s[{sRet}:{sRet+1}]")
    E.e(f"{name}_main:")
    stamp(E, 1)
    W = Weave()
    for ks in range(16):
        base = len(W.bb)
        for mt in range(4):
            for qt in range(4):
                acc = v4(ACC + (mt * 4 + qt) * 4)
                W.mf(f"{MFMA} {acc}, {v4(RA(ks,mt))}, {v4(RB(ks,qt))}, {'0' if ks == 0 else acc}")
        W.pre(base, (lambda ks: lambda E: E.wait_vm(f"k{ks}"))(ks))
    for ks in range(16 - DEPTH):
        ops = loads(ks + DEPTH)
        for k, op in enumerate(ops):
            W.add((ks + 1) * 16 + k if (ks + 1) * 16 + k < 256 else 255, op)
    def epi_loads(E):
        E.e(f"v_lshlrev_b32 v{vT}, 10, v{vRow}")
        E.e(f"v_lshl_add_u32 v{vT}, v{vCg}, 4, v{vT}")
        E.e(f"s_lshl_b32 s{sT}, s{sTg}, 16")
        E.e(f"s_lshl_b32 s{sT2}, s{sMg}, 7")
        E.e(f"s_add_u32 s{sA}, s{sT}, s{sT2}")
        E.vmem(f"buffer_load_dwordx4 {v4(vX)}, v{vT}, {s4(SX)}, s{sA} offen", "ep")
        E.e(f"v_lshrrev_b32 v{vT+1}, 2, v{vCg}")
        E.e(f"v_lshlrev_b32 v{vT+1}, 12, v{vT+1}")
        E.e(f"v_lshrrev_b32 v{vT+2}, 4, v{vRow}")
        E.e(f"v_lshl_add_u32 v{vT+1}, v{vT+2}, 10, v{vT+1}")
        E.e(f"v_and_b32 v{vT+2}, 3, v{vCg}")
        E.e(f"v_lshl_add_u32 v{vT+1}, v{vT+2}, 8, v{vT+1}")
        E.e(f"v_and_b32 v{vT+2}, 15, v{vRow}")
        E.e(f"v_lshl_add_u32 v{vT+1}, v{vT+2}, 4, v{vT+1}")
        E.e(f"s_lshl_b32 s{sT2}, s{sMg}, 13")
        E.e(f"s_add_u32 s{sT}, s{sT}, s{sT2}")
        E.vmem(f"buffer_load_dwordx4 {v4(vXN)}, v{vT+1}, {s4(SWS)}, s{sT} offen", "ep")
    W.add(13 * 16 + 10, epi_loads)
    W.add(0, lambda E: stamp(E, 2))
    W.add(128, lambda E: stamp(E, 3))
    W.emit(E)
    stamp(E, 4)
    E.e(f"v_and_b32 v{vT+1}, 15, v{vLane}")
    E.e(f"v_mul_u32_u24 v{vT+1}, 272, v{vT+1}")
    E.e(f"v_lshrrev_b32 v{vT+2}, 4, v{vLane}")
    E.e(f"v_lshl_add_u32 v{vT+1}, v{vT+2}, 4, v{vT+1}")
    E.e(f"s_mul_i32 s{sT}, s{sW}, 17408")
    E.e(f"v_add_u32 v{vT+1}, s{sT}, v{vT+1}")
    E.e("s_nop 3")
    for mt in range(4):
        for qt in range(4):
            E.lds(f"ds_write_b128 v{vT+1}, {v4(ACC + (mt*4+qt)*4)} offset:{qt*16*272 + mt*64}", "w")
    E.e("s_waitcnt lgkmcnt(0)"); E.lg = []
    E.e("s_barrier")
    stamp(E, 5)
    E.e(f"v_mul_u32_u24 v{vT+1}, 272, v{vRow}")
    E.e(f"v_lshl_add_u32 v{vT+1}, v{vCg}, 5, v{vT+1}")
    E.e(f"v_add_u32 v{vT+2}, {4*17408}, v{vT+1}")
    for w in range(8):
        a = vT + 1 if w < 4 else vT + 2
        E.lds(f"ds_read_b128 {v4(w*8)}, v{a} offset:{(w%4)*17408}", f"r{w}")
        E.lds(f"ds_read_b128 {v4(w*8+4)}, v{a} offset:{(w%4)*17408+16}", f"r{w}")
        if w == 6: E.wait_lg("r0")
    for w in range(1, 8):
        E.wait_lg(f"r{w}")
        for k in range(8): E.e(f"v_add_f32 v{k}, v{k}, v{w*8+k}")
    E.e("s_waitcnt vmcnt(0)"); E.vm = []
    for k in range(4): E.e(f"v_cvt_pk_bf16_f32 v{8+k}, v{2*k}, v{2*k+1}")
    for k in range(4):
        E.e(f"v_lshlrev_b32 v{2*k}, 16, v{8+k}")
        E.e(f"v_and_b32 v{2*k+1}, 0xffff0000, v{8+k}")
        E.e(f"v_lshlrev_b32 v{16+2*k}, 16, v{vX+k}")
        E.e(f"v_and_b32 v{16+2*k+1}, 0xffff0000, v{vX+k}")
        E.e(f"v_lshlrev_b32 v{24+2*k}, 16, v{vXN+k}")
        E.e(f"v_and_b32 v{24+2*k+1}, 0xffff0000, v{vXN+k}")
    for k in range(8):
        E.e(f"v_add_f32 v{k}, v{k}, v{16+k}")
        E.e(f"v_add_f32 v{24+k}, v{24+k}, v{vY+k}")
    for k in range(4):
        E.e(f"v_cvt_pk_bf16_f32 v{8+k}, v{2*k}, v{2*k+1}")
        E.e(f"v_cvt_pk_bf16_f32 v{12+k}, v{24+2*k}, v{24+2*k+1}")
    for k in range(4):
        E.e(f"v_lshlrev_b32 v{2*k}, 16, v{8+k}")
        E.e(f"v_and_b32 v{2*k+1}, 0xffff0000, v{8+k}")
        E.e(f"v_lshlrev_b32 v{24+2*k}, 16, v{12+k}")
        E.e(f"v_and_b32 v{24+2*k+1}, 0xffff0000, v{12+k}")
    for k in range(8): E.e(f"v_add_f32 v{k}, v{k}, v{24+k}")
    for k in range(4): E.e(f"v_cvt_pk_bf16_f32 v{8+k}, v{2*k}, v{2*k+1}")
    E.e(f"buffer_store_dwordx4 {v4(8)}, v{vT}, {s4(SO)}, s{sA} offen")
    if PROF["on"]:
        stamp(E, 6)
        E.e("s_waitcnt vmcnt(0)")
    stamp_flush(E, 3, 8, SWS, sW, 32)
    E.e(f"{name}_end:")
    E.e("s_endpgm")
    for p in check(E.L, name): print("HAZARD", p)
    return head(name) + E.text(), kd(name, 256, 256, 96)

if __name__ == "__main__":
    t, k = gen_k3()
    print(len(t.splitlines()))
```

```python
from asmlib import *

WS_XN   = 0x0000000
WS_RS   = 0x0200000
WS_IDX  = 0x0208000
WS_UPD  = 0x0210000
WS_YP   = 0x0220000
NP      = 86
WS_GUF  = 0x0800000
WS_WOF  = 0x0400000
WS_K    = 0x1000000
WS_V    = 0x2000000
WS_CTX  = 0x3000000
WS_SIZE = 0x10000000

import struct, math
SCALE_BITS = struct.unpack("<I", struct.pack("<f", math.log2(math.e) / math.sqrt(128.0)))[0]

class Stream:
    def __init__(self, W, lead, age=10, maxper=1):
        self.W = W; self.lead = lead; self.age = age; self.maxper = maxper
        self.reads = []
        self.latest = {}
    def read(self, tag, texts, first_use, earliest=-10**9, lead=None, latest=10**9):
        self.reads.append((tag, texts, first_use, earliest, lead if lead is not None else self.lead))
        self.latest[tag] = latest
    def place(self, E, load=None):
        W = self.W
        n = len(W.bb)
        cnt = [0] * n
        cur = -10**9
        issue = {}
        for tag, texts, fu, ea, lead in self.reads:
            for k, tx in enumerate(texts):
                s = max(fu - lead + k, ea, cur)
                if s >= 0:
                    while cnt[s] >= self.maxper and s < fu - 3: s += 1
                    assert s < fu, (tag, s, fu)
                    cnt[s] += 1
                    W.add(s, (lambda tx, tag: (lambda E: E.lds(tx, tag)))(tx, tag))
                else:
                    E.lds(tx, tag)
                cur = s
                issue[tag] = s
                assert s < self.latest[tag], (tag, s, self.latest[tag])
        order = [r[0] for r in self.reads]
        covered = set()
        for idx, (tag, texts, fu, ea, lead) in sorted(enumerate(self.reads), key=lambda x: (x[1][2], x[0])):
            if tag in covered: continue
            last = idx
            for k in range(idx + 1, len(order)):
                if issue[order[k]] <= fu - self.age: last = k
                else: break
            for k in range(0, last + 1): covered.add(order[k])
            f = (lambda t: (lambda E: E.wait_lg(t)))(order[last])
            if fu >= 1 and issue[order[last]] < fu - 1: W.add(fu - 1, Op('s', f))
            else: W.pre(fu, f)

def wave_sum2(E, regs, tmp):
    for mod in ("quad_perm:[1,0,3,2]", "quad_perm:[2,3,0,1]", "row_half_mirror", "row_mirror"):
        if len(regs) < 3: E.e(f"s_nop {2 - len(regs)}" if len(regs) < 3 else "")
        for r in regs:
            E.e(f"v_add_f32_dpp v{r}, v{r}, v{r} {mod} row_mask:0xf bank_mask:0xf")
    for sw in ("v_permlane16_swap_b32", "v_permlane32_swap_b32"):
        for r, t in zip(regs, tmp):
            E.e(f"v_mov_b32 v{t}, v{r}")
        E.e("s_nop 1")
        for r, t in zip(regs, tmp):
            E.e(f"{sw} v{r}, v{t}")
        E.e("s_nop 0")
        for r, t in zip(regs, tmp):
            E.e(f"v_add_f32 v{r}, v{r}, v{t}")

def head(name):
    return f".text\n.globl {name}\n.p2align 8\n.type {name},@function\n{name}:\n"

WS_PROF = 0x8000000
PROF = {"on": False}
def stamp(E, i):
    if not PROF["on"]: return
    E.e(f"{PROF.get('op', 's_memrealtime')} s[{64+2*i}:{65+2*i}]")
    E.e("s_waitcnt lgkmcnt(0)"); E.lg = []
def stamp_init(E):
    if not PROF["on"]: return
    for i in range(64, 96): E.e(f"s_mov_b32 s{i}, 0")
    if "dbg" in PROF: E.e("s_load_dwordx2 s[92:93], s[0:1], 96")
    stamp(E, 0)
def stamp_flush(E, kid, nw, SWS, sW, vtmp):
    if not PROF["on"]: return
    stamp(E, 15)
    E.e("s_nop 7")
    E.e("s_nop 7")
    for i in range(16): E.e(f"v_mov_b32 v{vtmp+i}, s{64+2*i}")
    E.e(f"v_mov_b32 v{vtmp+16}, 0")
    E.e(f"s_mul_i32 s64, s2, {nw}")
    E.e(f"s_add_u32 s64, s64, s{sW}")
    E.e(f"s_lshl_b32 s64, s64, 6")
    E.e(f"s_add_u32 s64, s64, {hex(WS_PROF + kid * 0x40000)}")
    E.e("s_mov_b64 exec, 1")
    for q in range(4): E.e(f"buffer_store_dwordx4 {v4(vtmp+4*q)}, v{vtmp+16}, {s4(SWS)}, s64 offen offset:{q*16}")
    if PROF.get("dbg") == kid:
        n = PROF["n"] = PROF.get("n", 0) + 1
        E.e(f"s_cmp_lg_u32 s2, {PROF.get('blk', 100)}")
        E.e(f"s_cbranch_scc1 dbgskip{n}")
        E.e(f"s_cmp_lg_u32 s{sW}, 0")
        E.e(f"s_cbranch_scc1 dbgskip{n}")
        E.e("s_mov_b32 s68, s92"); E.e("s_and_b32 s69, s93, 0xffff"); E.e("s_mov_b32 s70, 256"); E.e("s_mov_b32 s71, 0x20000")
        blk = PROF.get('blk', 100)
        sel = [(0, 4, 0), (0, 4, 4), (0, 4, 6), (0, 4, 8), (0, 4, 9), (0, 4, 15), (2, 4, 0), (2, 4, 2), (2, 4, 4), (2, 4, 6), (2, 4, 10), (2, 4, 15), (3, nw, 0), (3, nw, 2), (3, nw, 4), (3, nw, 15)]
        E.e("s_waitcnt vmcnt(0)")
        E.e("s_mov_b64 exec, 0xffff")
        for i, (k, w_, st) in enumerate(sel):
            E.e(f"s_mov_b32 s64, {hex(WS_PROF + k * 0x40000 + blk * w_ * 64 + st * 4)}")
            E.e(f"v_writelane_b32 v{vtmp+16}, s64, {i}")
        E.e(f"buffer_load_dword v{vtmp}, v{vtmp+16}, {s4(SWS)}, 0 offen sc1")
        E.e(f"v_mbcnt_lo_u32_b32 v{vtmp+1}, -1, 0")
        E.e(f"v_lshlrev_b32 v{vtmp+1}, 2, v{vtmp+1}")
        E.e("s_waitcnt vmcnt(0)")
        E.e(f"v_readfirstlane_b32 s64, v{vtmp}")
        E.e("s_nop 3")
        E.e(f"v_subrev_u32 v{vtmp}, s64, v{vtmp}")
        E.e(f"buffer_store_dword v{vtmp}, v{vtmp+1}, s[68:71], 0 offen")
        E.e(f"dbgskip{n}:")

def wsum_ops(regs, tmp):
    L = []
    for mod in ("quad_perm:[1,0,3,2]", "quad_perm:[2,3,0,1]", "row_half_mirror", "row_mirror"):
        L.append(None)
        L += [f"v_add_f32_dpp v{r}, v{r}, v{r} {mod} row_mask:0xf bank_mask:0xf" for r in regs]
    for sw in ("v_permlane16_swap_b32", "v_permlane32_swap_b32"):
        L += [f"v_mov_b32 v{t}, v{r}" for r, t in zip(regs, tmp)]
        L.append(None)
        L += [f"{sw} v{r}, v{t}" for r, t in zip(regs, tmp)]
        L += [f"v_add_f32 v{r}, v{r}, v{t}" for r, t in zip(regs, tmp)]
    return L
```

```python
from asmlib import *

WS_XN   = 0x0000000
WS_RS   = 0x0200000
WS_IDX  = 0x0208000
WS_UPD  = 0x0210000
WS_YP   = 0x0220000
NP      = 86
WS_GUF  = 0x0800000
WS_WOF  = 0x0400000
WS_K    = 0x1000000
WS_V    = 0x2000000
WS_CTX  = 0x3000000
WS_SIZE = 0x10000000
CFG = {'shift': 0}
def ws_shift(E, lo):
    if CFG['shift']:
        E.e(f"s_add_u32 s{lo}, s{lo}, {hex(CFG['shift'])}")
        E.e(f"s_addc_u32 s{lo+1}, s{lo+1}, 0")
def wsz(): return WS_SIZE - CFG['shift']
WS_SHIFT = 1

import struct, math
SCALE_BITS = struct.unpack("<I", struct.pack("<f", math.log2(math.e) / math.sqrt(128.0)))[0]

class Stream:
    def __init__(self, W, lead, age=10, maxper=1):
        self.W = W; self.lead = lead; self.age = age; self.maxper = maxper
        self.reads = []
        self.latest = {}
    def read(self, tag, texts, first_use, earliest=-10**9, lead=None, latest=10**9):
        self.reads.append((tag, texts, first_use, earliest, lead if lead is not None else self.lead))
        self.latest[tag] = latest
    def place(self, E, load=None):
        W = self.W
        n = len(W.bb)
        cnt = [0] * n
        cur = -10**9
        issue = {}
        for tag, texts, fu, ea, lead in self.reads:
            for k, tx in enumerate(texts):
                s = max(fu - lead + k, ea, cur)
                if s >= 0:
                    while cnt[s] >= self.maxper and s < fu - 3: s += 1
                    assert s < fu, (tag, s, fu)
                    cnt[s] += 1
                    W.add(s, (lambda tx, tag: (lambda E: E.lds(tx, tag)))(tx, tag))
                else:
                    E.lds(tx, tag)
                cur = s
                issue[tag] = s
                assert s < self.latest[tag], (tag, s, self.latest[tag])
        order = [r[0] for r in self.reads]
        covered = set()
        for idx, (tag, texts, fu, ea, lead) in sorted(enumerate(self.reads), key=lambda x: (x[1][2], x[0])):
            if tag in covered: continue
            last = idx
            for k in range(idx + 1, len(order)):
                if issue[order[k]] <= fu - self.age: last = k
                else: break
            for k in range(0, last + 1): covered.add(order[k])
            f = (lambda t: (lambda E: E.wait_lg(t)))(order[last])
            if fu >= 1 and issue[order[last]] < fu - 1: W.add(fu - 1, Op('s', f))
            else: W.pre(fu, f)

def wave_sum2(E, regs, tmp):
    for mod in ("quad_perm:[1,0,3,2]", "quad_perm:[2,3,0,1]", "row_half_mirror", "row_mirror"):
        if len(regs) < 3: E.e(f"s_nop {2 - len(regs)}" if len(regs) < 3 else "")
        for r in regs:
            E.e(f"v_add_f32_dpp v{r}, v{r}, v{r} {mod} row_mask:0xf bank_mask:0xf")
    for sw in ("v_permlane16_swap_b32", "v_permlane32_swap_b32"):
        for r, t in zip(regs, tmp):
            E.e(f"v_mov_b32 v{t}, v{r}")
        E.e("s_nop 1")
        for r, t in zip(regs, tmp):
            E.e(f"{sw} v{r}, v{t}")
        E.e("s_nop 0")
        for r, t in zip(regs, tmp):
            E.e(f"v_add_f32 v{r}, v{r}, v{t}")

def head(name):
    return f".text\n.globl {name}\n.p2align 8\n.type {name},@function\n{name}:\n"

WS_PROF = 0x8000000
PROF = {"on": False}
def stamp(E, i):
    if not PROF["on"]: return
    E.e(f"{PROF.get('op', 's_memrealtime')} s[{64+2*i}:{65+2*i}]")
    E.e("s_waitcnt lgkmcnt(0)"); E.lg = []
def stamp_init(E):
    if not PROF["on"]: return
    for i in range(64, 96): E.e(f"s_mov_b32 s{i}, 0")
    if "dbg" in PROF: E.e("s_load_dwordx2 s[92:93], s[0:1], 96")
    stamp(E, 0)
def stamp_flush(E, kid, nw, SWS, sW, vtmp):
    if not PROF["on"]: return
    stamp(E, 15)
    E.e("s_nop 7")
    E.e("s_nop 7")
    for i in range(16): E.e(f"v_mov_b32 v{vtmp+i}, s{64+2*i}")
    E.e(f"v_mov_b32 v{vtmp+16}, 0")
    E.e(f"s_mul_i32 s64, s2, {nw}")
    E.e(f"s_add_u32 s64, s64, s{sW}")
    E.e(f"s_lshl_b32 s64, s64, 6")
    E.e(f"s_add_u32 s64, s64, {hex(WS_PROF + kid * 0x40000)}")
    E.e("s_mov_b64 exec, 1")
    for q in range(4): E.e(f"buffer_store_dwordx4 {v4(vtmp+4*q)}, v{vtmp+16}, {s4(SWS)}, s64 offen offset:{q*16}")
    if PROF.get("dbg") == kid:
        n = PROF["n"] = PROF.get("n", 0) + 1
        E.e(f"s_cmp_lg_u32 s2, {PROF.get('blk', 100)}")
        E.e(f"s_cbranch_scc1 dbgskip{n}")
        E.e(f"s_cmp_lg_u32 s{sW}, 0")
        E.e(f"s_cbranch_scc1 dbgskip{n}")
        E.e("s_mov_b32 s68, s92"); E.e("s_and_b32 s69, s93, 0xffff"); E.e("s_mov_b32 s70, 256"); E.e("s_mov_b32 s71, 0x20000")
        blk = PROF.get('blk', 100)
        sel = [(0, 4, 0), (0, 4, 4), (0, 4, 6), (0, 4, 8), (0, 4, 9), (0, 4, 15), (2, 4, 0), (2, 4, 2), (2, 4, 4), (2, 4, 6), (2, 4, 10), (2, 4, 15), (3, nw, 0), (3, nw, 2), (3, nw, 4), (3, nw, 15)]
        E.e("s_waitcnt vmcnt(0)")
        E.e("s_mov_b64 exec, 0xffff")
        for i, (k, w_, st) in enumerate(sel):
            E.e(f"s_mov_b32 s64, {hex(WS_PROF + k * 0x40000 + blk * w_ * 64 + st * 4)}")
            E.e(f"v_writelane_b32 v{vtmp+16}, s64, {i}")
        E.e(f"buffer_load_dword v{vtmp}, v{vtmp+16}, {s4(SWS)}, 0 offen sc1")
        E.e(f"v_mbcnt_lo_u32_b32 v{vtmp+1}, -1, 0")
        E.e(f"v_lshlrev_b32 v{vtmp+1}, 2, v{vtmp+1}")
        E.e("s_waitcnt vmcnt(0)")
        E.e(f"v_readfirstlane_b32 s64, v{vtmp}")
        E.e("s_nop 3")
        E.e(f"v_subrev_u32 v{vtmp}, s64, v{vtmp}")
        E.e(f"buffer_store_dword v{vtmp}, v{vtmp+1}, s[68:71], 0 offen")
        E.e(f"dbgskip{n}:")

def wsum_ops(regs, tmp):
    L = []
    for mod in ("quad_perm:[1,0,3,2]", "quad_perm:[2,3,0,1]", "row_half_mirror", "row_mirror"):
        L.append(None)
        L += [f"v_add_f32_dpp v{r}, v{r}, v{r} {mod} row_mask:0xf bank_mask:0xf" for r in regs]
    for sw in ("v_permlane16_swap_b32", "v_permlane32_swap_b32"):
        L += [f"v_mov_b32 v{t}, v{r}" for r, t in zip(regs, tmp)]
        L.append(None)
        L += [f"{sw} v{r}, v{t}" for r, t in zip(regs, tmp)]
        L += [f"v_add_f32 v{r}, v{r}, v{t}" for r, t in zip(regs, tmp)]
    return L
```

```python
from common import *

def gen_k1(name="k1_kernel", stflag="", rot=1, touch=1, codepf=1, tflag="", wqt=1, wof=1, sflag="", tlb=0):
    E = Em()
    SCK, SWK, SWV, SWS, SA = 28, 32, 36, 40, 44
    sW, sH, sRT = 48, 49, 50
    sCK0, sWo, sM, sT, sT2, sKst, sVst = 51, 52, 53, 54, 55, 56, 57
    sCKl, sWl, sUl = 58, 59, 60
    sWv, sU1, sSc = 61, 62, 63
    sRot, sJ, sU2, sU3, sU4, sU5 = 96, 97, 98, 99, 100, 101
    sKt, sL1, sL2, sL3, sL4 = 26, 27, 3, 0, 1
    ACC1, ACC2, WF = 0, 128, 192
    vW = 224
    vA0, vA1 = 236, 237
    vCK = 238
    vWD = 242
    vL16, vLane = 246, 247
    vT = 248
    NWF = 8
    KT = lambda c, a: ACC1 + (c * 4 + a) * 4
    CF = lambda a, kb: (kb * 4 + a) * 4
    L_W = lambda slot: slot * 16384
    L_SP = 49152
    L_CK = 65536

    E.e("s_cmp_ge_u32 s2, 256")
    E.e(f"s_cbranch_scc1 {name}_end")
    stamp_init(E)
    E.e("s_load_dwordx4 s[4:7], s[0:1], 0")
    E.e("s_load_dwordx8 s[8:15], s[0:1], 16")
    E.e("s_load_dwordx8 s[16:23], s[0:1], 56")
    E.e("s_load_dwordx2 s[24:25], s[0:1], 104")
    E.e("s_load_dwordx2 s[26:27], s[0:1], 88")
    E.e(f"v_and_b32 v{vLane}, 63, v0")
    E.e(f"v_lshrrev_b32 v{vT}, 6, v0")
    E.e(f"v_lshlrev_b32 v{vL16}, 4, v{vLane}")
    E.e(f"v_readfirstlane_b32 s{sW}, v{vT}")
    E.e(f"s_and_b32 s{sRot}, s2, 7")
    E.e(f"s_lshr_b32 s{sT2}, s2, 3")
    E.e(f"s_and_b32 s{sRT}, s{sT2}, 7")
    E.e(f"s_lshr_b32 s{sT2}, s{sT2}, 3")
    E.e(f"s_lshl_b32 s{sH}, s{sRot}, 2")
    E.e(f"s_add_u32 s{sH}, s{sH}, s{sT2}")
    if not rot: E.e(f"s_mov_b32 s{sRot}, 0")
    E.e(f"v_lshrrev_b32 v{vT}, 3, v{vLane}")
    E.e(f"v_lshlrev_b32 v{vT}, 10, v{vT}")
    E.e(f"v_and_b32 v{vT+1}, 7, v{vLane}")
    E.e(f"v_lshrrev_b32 v{vT+2}, 4, v{vLane}")
    E.e(f"v_xor_b32 v{vT+1}, v{vT+1}, v{vT+2}")
    E.e(f"v_lshl_add_u32 v{vCK}, v{vT+1}, 4, v{vT}")
    E.e(f"v_xor_b32 v{vT+3}, 64, v{vCK}")
    E.e(f"v_add_u32 v{vCK+1}, {7*1024}, v{vT+3}")
    E.e(f"v_add_u32 v{vCK+2}, {14*1024}, v{vCK}")
    E.e(f"v_add_u32 v{vCK+3}, {21*1024}, v{vT+3}")
    E.e(f"v_bfe_u32 v{vT}, v{vLane}, 1, 3")
    E.e(f"v_xor_b32 v{vT}, v{vT}, v{vT+2}")
    E.e(f"v_lshlrev_b32 v{vT}, 5, v{vT}")
    E.e(f"v_and_b32 v{vT+1}, 1, v{vLane}")
    E.e(f"v_lshl_add_u32 v{vT}, v{vT+1}, 4, v{vT}")
    E.e(f"v_lshl_add_u32 v{vWD}, v{vT+2}, 13, v{vT}")
    E.e(f"v_add_u32 v{vWD+1}, {32768-1024}, v{vWD}")
    E.e(f"v_xor_b32 v{vT+3}, 128, v{vWD}")
    E.e(f"v_add_u32 v{vWD+2}, {2*(32768-1024)}, v{vT+3}")
    E.e(f"v_add_u32 v{vWD+3}, {3*(32768-1024)}, v{vT+3}")
    E.e(f"s_mul_i32 s{sCKl}, s{sW}, 24576")
    E.e(f"s_add_u32 s{sCKl}, s{sCKl}, {L_CK}")
    E.e(f"s_lshl_b32 s{sWl}, s{sW}, 12")
    E.e(f"s_lshl_b32 s{sCK0}, s{sRT}, 18")
    E.e(f"s_lshl_b32 s{sT}, s{sW}, 16")
    E.e(f"s_add_u32 s{sCK0}, s{sCK0}, s{sT}")
    E.e(f"s_lshl_b32 s{sWo}, s{sW}, 17")
    E.e(f"s_lshl_b32 s{sT}, s{sH}, 8")
    E.e(f"s_add_u32 s{sWo}, s{sWo}, s{sT}")
    E.e("s_waitcnt lgkmcnt(0)")
    srd(E, SWK, 10, 0x400000); srd(E, SCK, 6, 0x200000)

    def rotw(E, j):
        E.e(f"s_add_u32 s{sJ}, s{sRot}, {j}")
        E.e(f"s_and_b32 s{sJ}, s{sJ}, 7")
        E.e(f"s_lshl_b32 s{sJ}, s{sJ}, 19")
        E.e(f"s_add_u32 s{sT2}, s{sWo}, s{sJ}")
    def dma_ck(j):
        slot = j % 3
        ops = [f"s_add_u32 s{sJ}, s{sRot}, {j}", f"s_and_b32 s{sJ}, s{sJ}, 7", f"s_lshl_b32 s{sJ}, s{sJ}, 7", f"s_add_u32 m0, s{sCKl}, {slot*8192}",
               f"s_add_u32 s{sT}, s{sCK0}, s{sJ}"]
        for grp in range(2):
            if grp: ops += [f"s_add_u32 m0, s{sCKl}, {slot*8192 + 4096}", f"s_add_u32 s{sT}, s{sT}, 32768"]
            for i in range(4):
                ops.append(Op("m", lambda E, i=i: E.vmem(f"buffer_load_dwordx4 v{vCK+i}, {s4(SCK)}, s{sT} offen offset:{i*1024} lds", f"c{j}"), 1))
        return ops
    rot_ops = lambda j: [f"s_add_u32 s{sJ}, s{sRot}, {j}", f"s_and_b32 s{sJ}, s{sJ}, 7", f"s_lshl_b32 s{sJ}, s{sJ}, 19"]
    def dma_w(j):
        ops = rot_ops(j) + [f"s_add_u32 m0, s{sWl}, {L_W(j % 3)}", f"s_add_u32 s{sT2}, s{sWo}, s{sJ}"]
        for i in range(4):
            ops.append(Op("m", lambda E, i=i: E.vmem(f"buffer_load_dwordx4 v{vWD+i}, {s4(SWK)}, s{sT2} offen offset:{i*1024} lds", f"c{j}"), 1))
        return ops
    ULOC = {0: L_SP, 1: L_SP + 8192, 2: L_W(2), 3: L_W(2) + 8192, 8: L_W(0), 9: L_W(0) + 8192, 14: L_W(1), 15: L_W(1) + 8192}
    for w in range(4):
        ULOC[4 + w] = L_CK + w * 24576 + 16384
        ULOC[10 + w] = L_CK + w * 24576
    def dma_u(pair):
        d = ULOC[2 * pair + 1] - ULOC[2 * pair]
        ops = rot_ops(pair) + [f"s_mul_i32 s{sT2}, s{sU1}, {d}", f"s_add_u32 s{sT2}, s{sT2}, s{sUl}", f"s_add_u32 m0, s{sT2}, {ULOC[2*pair]}",
                               f"s_add_u32 s{sT2}, s{sWo}, s{sJ}"]
        for i in range(4):
            ops.append(Op("m", lambda E, i=i: E.vmem(f"buffer_load_dwordx4 v{vWD+i}, {s4(SWV)}, s{sT2} offen offset:{i*1024} lds", f"u{pair}"), 1))
        return ops

    X0, X1, WR = 128, 132, 136
    lnld = [f"s_mov_b32 s{SA}, s4", f"s_and_b32 s{SA+1}, s5, 0xffff", f"s_mov_b32 s{SA+2}, 0x200000", f"s_mov_b32 s{SA+3}, 0x20000",
            f"s_lshl_b32 s{sT}, s2, 13", f"s_lshl_b32 s{sT2}, s{sW}, 11", f"s_add_u32 s{sT}, s{sT}, s{sT2}",
            Op("m", lambda E: E.vmem(f"buffer_load_dwordx4 {v4(X0)}, v{vL16}, {s4(SA)}, s{sT} offen", "ln")),
            Op("m", lambda E: E.vmem(f"buffer_load_dwordx4 {v4(X1)}, v{vL16}, {s4(SA)}, s{sT} offen offset:1024", "ln")),
            f"s_mov_b32 s{SA}, s16", f"s_and_b32 s{SA+1}, s17, 0xffff", f"s_mov_b32 s{SA+2}, 1024",
            Op("m", lambda E: E.vmem(f"buffer_load_dwordx4 {v4(WR)}, v{vL16}, {s4(SA)}, 0 offen", "ln"))]
    ffld = [f"s_lshl_b32 s{sT}, s2, 2", f"s_add_u32 s{sT}, s{sT}, s{sW}", f"s_mul_hi_u32 s{sU2}, s{sT}, 12485371",
            f"s_mul_i32 s{sT2}, s{sU2}, 344", f"s_sub_u32 s{sT}, s{sT}, s{sT2}", f"s_mul_hi_u32 s{sU3}, s{sT}, 99882961",
            f"s_mul_i32 s{sT2}, s{sU3}, 43", f"s_sub_u32 s{sU4}, s{sT}, s{sT2}",
            Op("s", lambda E: put(E, [f"s_cmp_eq_u32 s{sU2}, 0", f"s_cselect_b32 s{SA}, s18, s20", f"s_cselect_b32 s{SA+1}, s19, s21"])),
            Op("s", lambda E: put(E, [f"s_cmp_eq_u32 s{sU2}, 2", f"s_cselect_b32 s{SA}, s22, s{SA}", f"s_cselect_b32 s{SA+1}, s23, s{SA+1}"])),
            f"s_and_b32 s{SA+1}, s{SA+1}, 0xffff", f"s_mov_b32 s{SA+2}, {512*2752}",
            f"s_mul_i32 s{sT}, s{sU3}, {64*2752}", f"s_lshl_b32 s{sT2}, s{sU4}, 6", f"s_add_u32 s{sT}, s{sT}, s{sT2}"]
    for i in range(4):
        ffld += [f"s_add_u32 m0, s{sWl}, {L_SP + i*1024}", f"s_add_u32 s{sT2}, s{sT}, {i*16*2752}",
                 Op("m", lambda E: E.vmem(f"buffer_load_dwordx4 v{vT}, {s4(SA)}, s{sT2} offen lds", "ff"))]
    vTC = vW + 11
    def ctouch(first, mask):
        return [f"s_and_b32 s{sJ}, s{sH}, {mask}", f"s_add_u32 s{sJ}, s{sJ}, s{sRot}", f"s_add_u32 s{sJ}, s{sJ}, {first}", f"s_and_b32 s{sJ}, s{sJ}, 7",
                f"s_lshl_b32 s{sJ}, s{sJ}, 7", f"s_add_u32 s{sT2}, s{sCK0}, s{sJ}",
                Op("m", lambda E: E.vmem(f"buffer_load_dword v{vT+3}, v{vTC}, {s4(SCK)}, s{sT2} offen{tflag}", "t"))]
    put(E, dma_w(0) + dma_ck(0))
    srd(E, SWV, 12, 0x400000); ws_shift(E, 24); srd(E, SWS, 24, wsz())
    E.e(f"s_and_b32 s{sUl}, s{sW}, 1")
    E.e(f"s_lshr_b32 s{sU1}, s{sW}, 1")
    E.e(f"s_lshl_b32 s{sT2}, s{sRT}, 1")
    E.e(f"s_add_u32 s{sT2}, s{sT2}, s{sUl}")
    E.e(f"s_lshl_b32 s{sT2}, s{sT2}, 18")
    E.e(f"s_lshl_b32 s{sJ}, s{sH}, 8")
    E.e(f"s_add_u32 s{sU5}, s{sT2}, s{sJ}")
    if touch & 1:
        E.e(f"v_lshrrev_b32 v{vT+1}, 1, v{vLane}")
        E.e(f"v_lshlrev_b32 v{vT+1}, 13, v{vT+1}")
        E.e(f"v_and_b32 v{vT+3}, 1, v{vLane}")
        E.e(f"v_lshl_add_u32 v{vT+1}, v{vT+3}, 7, v{vT+1}")
        E.e(f"s_cmp_lt_u32 s{sW}, 2")
        E.e(f"s_cselect_b32 s{SA}, s10, s12")
        E.e(f"s_cselect_b32 s{SA+1}, s11, s13")
        E.e(f"s_and_b32 s{SA+1}, s{SA+1}, 0xffff")
        E.e(f"s_mov_b32 s{SA+2}, 0x400000")
        E.e(f"s_mov_b32 s{SA+3}, 0x20000")
        E.vmem(f"buffer_load_dword v{vT+4}, v{vT+1}, {s4(SA)}, s{sU5} offen{tflag}", "t")
    put(E, dma_w(1) + dma_ck(1))
    put(E, [f"v_lshrrev_b32 v{vT}, 2, v{vLane}", f"v_mul_u32_u24 v{vT}, 2752, v{vT}", f"v_and_b32 v{vT+1}, 3, v{vLane}",
            f"v_lshl_add_u32 v{vT}, v{vT+1}, 4, v{vT}", f"v_lshlrev_b32 v{vTC}, 10, v{vLane}"])
    put(E, lnld + ffld)
    if codepf:
        E.e(f"s_lshr_b32 s{sT}, s2, 3")
        E.e(f"s_cmp_ge_u32 s{sT}, 2")
        E.e(f"s_cbranch_scc1 {name}_nopf")
        E.e(f"s_lshl_b32 s{sT}, s{sT}, 2")
        E.e(f"s_add_u32 s{sT}, s{sT}, s{sW}")
        E.e(f"s_lshl_b32 s{sT}, s{sT}, 13")
        E.e(f"v_lshl_add_u32 v{vT}, v{vLane}, 7, s{sT}")
        E.e(f"v_min_u32 v{vT}, code_end-{name}_pc-4, v{vT}")
        E.e(f"s_getpc_b64 s[0:1]")
        E.e(f"{name}_pc:")
        E.e(f"v_mov_b32 v{vT+1}, s1")
        E.e(f"v_add_co_u32 v{vT}, vcc, s0, v{vT}")
        E.e("s_nop 1")
        E.e(f"v_addc_co_u32 v{vT+1}, vcc, 0, v{vT+1}, vcc")
        E.e(f"global_load_dword v{vT+7}, v[{vT}:{vT+1}], off")
        E.e(f"{name}_nopf:")
    E.e(f"s_lshl_b32 s{sUl}, s{sUl}, 12")
    E.e(f"v_lshrrev_b32 v{vT+2}, 4, v{vLane}")
    E.e(f"v_bfe_u32 v{vT}, v{vLane}, 2, 2")
    E.e(f"v_lshl_add_u32 v{vT+1}, v{vT+2}, 3, v{vT}")
    E.e(f"v_lshlrev_b32 v{vT+1}, 8, v{vT+1}")
    E.e(f"v_and_b32 v{vT+3}, 3, v{vLane}")
    E.e(f"v_lshl_add_u32 v{vT+1}, v{vT+3}, 3, v{vT+1}")
    E.e(f"v_and_b32 v{vT+3}, 1, v{vT+2}")
    E.e(f"v_lshl_add_u32 v{vT}, v{vT+3}, 2, v{vT}")
    E.e(f"v_lshl_add_u32 v{vW}, v{vT}, 5, v{vT+1}")
    for c in range(1, 8): E.e(f"v_xor_b32 v{vW+c}, {c*32}, v{vW}")
    E.e(f"v_and_b32 v{vT}, 15, v{vLane}")
    E.e(f"v_lshrrev_b32 v{vT+1}, 1, v{vT}")
    E.e(f"v_xor_b32 v{vT+1}, v{vT+1}, v{vT+2}")
    E.e(f"v_lshlrev_b32 v{vT+1}, 4, v{vT+1}")
    E.e(f"v_lshl_add_u32 v{vA0}, v{vT}, 7, v{vT+1}")
    E.e(f"v_add_u32 v{vA0}, s{sCKl}, v{vA0}")
    E.e(f"v_xor_b32 v{vA1}, 64, v{vA0}")
    E.e(f"s_lshl_b32 s{sKst}, s{sH}, 19")
    E.e(f"s_lshl_b32 s{sT}, s{sRT}, 16")
    E.e(f"s_add_u32 s{sKst}, s{sKst}, s{sT}")
    E.e(f"s_lshl_b32 s{sT}, s{sW}, 14")
    E.e(f"s_add_u32 s{sKst}, s{sKst}, s{sT}")
    E.e(f"s_add_u32 s{sVst}, s{sKst}, {hex(WS_V)}")
    E.e(f"s_add_u32 s{sKst}, s{sKst}, {hex(WS_K)}")
    E.e(f"s_mov_b32 s{sSc}, {hex(SCALE_BITS)}")
    stamp(E, 3)
    E.wait_vm("c0")
    E.e("s_barrier")
    stamp(E, 4)

    W = Weave()
    S = Stream(W, lead=20, age=10, maxper=1)
    fi = [0]; ring_last = {}
    def wfrag_read(base_reg, off, first_use, earliest, latest=10**9):
        r = WF + (fi[0] % NWF) * 4
        ea = max(earliest, ring_last.get(fi[0] % NWF, -10**9))
        S.read(f"wf{fi[0]}", [f"ds_read_b64_tr_b16 {v2(r)}, v{base_reg} offset:{off}", f"ds_read_b64_tr_b16 {v2(r+2)}, v{base_reg} offset:{off+1024}"], first_use, ea, latest=latest)
        ring_last[fi[0] % NWF] = first_use + 3
        fi[0] += 1
        return r
    BARPOS = 48
    bar_slot = {0: -10**9}
    for j in range(1, 8): bar_slot[j] = (j - 1) * 64 + BARPOS
    for j in range(8):
        for ks in range(2):
            kb = 2 * j + ks
            base = len(W.bb)
            for a in range(4):
                S.read(f"cf{kb}_{a}", [f"ds_read_b128 {a4(CF(a,kb))}, v{vA1 if ks else vA0} offset:{(j%3)*8192 + a*2048}"], base + a, bar_slot[j], lead=24, latest=j*64+BARPOS)
            for c in range(8):
                r = wfrag_read(vW + c, L_W(j % 3) + ks * 8192, base + 4 * c, bar_slot[j], latest=j*64+BARPOS)
                for a in range(4):
                    W.mf(f"{MFMA} {v4(KT(c,a))}, {v4(r)}, {a4(CF(a,kb))}, {'0' if kb == 0 else v4(KT(c,a))}")
    P1END = len(W.bb)
    VT = lambda a, c: ACC2 + (c * 4 + a) * 4
    def uaddr(u, cc):
        loc = ULOC[u]; win = loc // 65536
        return vW + win * 4 + cc, loc - win * 65536
    B7 = 7 * 64 + BARPOS
    ubar = {u: (B7 if u < 8 else (P1END + 5 * 16 if u < 14 else P1END + 11 * 16)) for u in range(16)}
    ADDR2B = P1END + 256 - 22
    for u in range(16):
        base = len(W.bb)
        for c in range(4):
            reg, off = uaddr(u, c)
            r = wfrag_read(reg, off, base + 4 * c, ubar[u], latest=ADDR2B)
            for a in range(4):
                W.mf(f"{MFMA} {v4(VT(a,c))}, {a4(CF(a,u))}, {v4(r)}, {'0' if u == 0 else v4(VT(a,c))}")
    P2AEND = len(W.bb)
    VB = lambda a, c: ACC1 + ((c & 1) * 4 + a) * 4
    for c in range(4):
        for u in range(16):
            base = len(W.bb)
            reg, off = uaddr(u, c)
            r = wfrag_read(reg, off, base, ADDR2B + 1)
            for a in range(4):
                W.mf(f"{MFMA} {v4(VB(a,c))}, {a4(CF(a,u))}, {v4(r)}, {'0' if u == 0 else v4(VB(a,c))}")
    NTOT = len(W.bb)
    def barrier_at(slot, vmtags):
        def f(E):
            E.wait_vm(*vmtags)
            E.e("s_waitcnt lgkmcnt(0)"); E.lg = []
            E.e("s_barrier")
        W.first(slot, f, -2)
    def addr2a(E):
        for cc in range(4):
            E.e(f"v_add_u32 v{vW+4+cc}, 0x10000, v{vW+cc}")
            E.e(f"v_add_u32 v{vW+8+cc}, 0x20000, v{vW+cc}")
    W.first(B7, addr2a, -1)
    def addr2b(E):
        for k in range(12): E.e(f"v_xor_b32 v{vW+k}, 128, v{vW+k}")
    W.add(ADDR2B, addr2b)
    S.place(E)
    def spread(ops, s0, s1):
        groups = [[]]
        for op in ops:
            groups[-1].append(op)
            if classify(op)[0] == "m": groups.append([])
        assert not groups[-1]; groups.pop()
        n = len(groups); lo = s0
        for k, grp in enumerate(groups):
            g = max(s0 + (k * (s1 - s0)) // n, lo + len(grp) - 2)
            if W.load[g] >= 1 and g + 1 < s1 and W.load[g + 1] == 0: g += 1
            for q, op in enumerate(grp[:-1]):
                W.add(max(lo, g - (len(grp) - 2 - q)) , op)
            W.add(g, grp[-1]); lo = g + 1
        return lo
    wold = [f"s_mov_b32 s{SA}, s14", f"s_and_b32 s{SA+1}, s15, 0xffff", f"s_mov_b32 s{SA+2}, 0x400000",
            f"s_lshr_b32 s{sT}, s2, 1", f"s_lshl_b32 s{sT}, s{sT}, 15", f"s_and_b32 s{sM}, s2, 1", f"s_lshl_b32 s{sM}, s{sM}, 2",
            f"s_add_u32 s{sM}, s{sM}, s{sW}", f"s_lshl_b32 s{sT2}, s{sM}, 7", f"s_add_u32 s{sT}, s{sT}, s{sT2}"]
    for i in range(4):
        wold += [f"s_add_u32 m0, s{sWl}, {L_SP + i*1024}", f"s_add_u32 s{sT2}, s{sT}, {i*8192}",
                 Op("m", lambda E: E.vmem(f"buffer_load_dwordx4 v{vT+2}, {s4(SA)}, s{sT2} offen lds", "wo"))]
    W.chain([f"v_lshrrev_b32 v{vT+2}, 3, v{vLane}", f"v_lshlrev_b32 v{vT+2}, 10, v{vT+2}", f"v_and_b32 v{vT+3}, 7, v{vLane}",
             f"v_lshl_add_u32 v{vT+2}, v{vT+3}, 4, v{vT+2}"], 4)
    W.add(0, f"v_and_b32 v{vT+1}, 3, v{vLane}")
    spread(dma_w(2) + dma_ck(2) + (ctouch(3, 3) if touch & 2 else []), 0, BARPOS - 8)
    for j in range(8):
        bs = j * 64 + BARPOS
        barrier_at(bs, [f"c{j+1}"] if j < 7 else ["u0", "u1", "u2", "u3"])
        if j + 3 < 8:
            ops = dma_w(j + 3) + dma_ck(j + 3)
            if j == 0 and touch & 2: ops = ops + ctouch(7, 0)
            if j == 2 and wof: ops = ops + wold
            if j == 4: ops = ops + (dma_u(0) if not wof else [])
        elif j == 5: ops = (dma_u(0) if wof else []) + dma_u(1) + dma_u(2) + dma_u(3)
        elif j == 6: ops = dma_u(4) + dma_u(5) + dma_u(6)
        else: ops = dma_u(7)
        spread(ops, bs + 1, bs + 62 if j < 7 else bs + 24)
    barrier_at(P1END + 5 * 16, ["u4", "u5", "u6"])
    barrier_at(P1END + 11 * 16, ["u7"])
    def pack_ops(src0, src1, sbase, idx, scale=False):
        L = []
        if scale:
            L += [f"v_mul_f32 v{r}, s{sSc}, v{r}" for r in list(range(src0, src0 + 4)) + list(range(src1, src1 + 4))]
        L += [f"v_cvt_pk_bf16_f32 v{src0}, v{src0}, v{src0+1}", f"v_cvt_pk_bf16_f32 v{src0+1}, v{src0+2}, v{src0+3}",
              f"v_cvt_pk_bf16_f32 v{src0+2}, v{src1}, v{src1+1}", f"v_cvt_pk_bf16_f32 v{src0+3}, v{src1+2}, v{src1+3}",
              f"s_add_u32 s{sWv}, s{sbase}, {(idx>>2)*4096}",
              Op("m", lambda E: E.vmem(f"buffer_store_dwordx4 {v4(src0)}, v{vL16}, {s4(SWS)}, s{sWv} offen offset:{(idx&3)*1024}{stflag}", "st"), 2)]
        return L
    g = P2AEND + 8
    for c in range(4):
        for n in range(2):
            g, left = W.chain(pack_ops(VT(2 * n, c), VT(2 * n + 1, c), sVst, n * 8 + c), g); assert not left
    assert g < P2AEND + 64 + 8
    for c in range(3):
        g = P2AEND + (c + 1) * 64 + 8
        for n in range(2):
            g, left = W.chain(pack_ops(VB(2 * n, c), VB(2 * n + 1, c), sVst, n * 8 + 4 + c), g); assert not left
    g = P1END + 10
    for t in range(4):
        for a in range(4):
            g, left = W.chain(pack_ops(KT(2 * t, a), KT(2 * t + 1, a), sKst, a * 4 + t, scale=True), g); assert not left
    gK = g
    assert gK < P2AEND - 4, gK
    FFT = 176
    sa, sb = sWv, sKt
    tr = [f"v_lshrrev_b32 v{vT+4}, 4, v{vLane}", f"v_bfe_u32 v{vT+5}, v{vLane}, 2, 2", f"v_lshl_add_u32 v{vT+4}, v{vT+4}, 3, v{vT+5}",
          f"v_lshlrev_b32 v{vT+4}, 6, v{vT+4}", f"v_lshl_add_u32 v{vT+4}, v{vT+1}, 3, v{vT+4}", f"v_add_u32 v{vT+4}, s{sWl}, v{vT+4}",
          Op("s", lambda E: E.wait_vm("ff"))]
    for js in range(2):
        for ks in range(2):
            q = js * 2 + ks; o = L_SP + ks * 2048 + js * 32
            tr.append(Op("m", lambda E, q=q, o=o: E.lds(f"ds_read_b64_tr_b16 {v2(FFT+4*q)}, v{vT+4} offset:{o}", "fft")))
            tr.append(Op("m", lambda E, q=q, o=o: E.lds(f"ds_read_b64_tr_b16 {v2(FFT+4*q+2)}, v{vT+4} offset:{o+256}", "fft")))
    tr += [f"s_lshl_b32 s{sa}, s{sU4}, 16", f"s_lshl_b32 s{sb}, s{sU2}, 14", f"s_add_u32 s{sa}, s{sa}, s{sb}", f"s_lshl_b32 s{sb}, s{sU3}, 11",
           f"s_add_u32 s{sa}, s{sa}, s{sb}", f"s_add_u32 s{sa}, s{sa}, {hex(WS_GUF)}",
           Op("s", lambda E: put(E, [f"s_cmp_eq_u32 s{sU2}, 2", f"s_cselect_b32 s{sa}, 0x7fff0000, s{sa}"])),
           f"s_add_u32 s{sb}, s{sa}, 32768", 4, Op("s", lambda E: E.wait_lg("fft"))]
    for q in range(4):
        tr.append(Op("m", lambda E, q=q: E.vmem(f"buffer_store_dwordx4 {v4(FFT+4*q)}, v{vL16}, {s4(SWS)}, s{sb if q >= 2 else sa} offen offset:{(q&1)*1024}{sflag}", "st")))
        tr.append(2)
    gT, left = W.chain(tr, 2 * 64 + 2); assert not left
    assert gT < 2 * 64 + BARPOS + 30, gT
    if wof:
        tw = [f"v_lshrrev_b32 v{vT+4}, 2, v{vLane}", f"v_lshlrev_b32 v{vT+4}, 7, v{vT+4}",
              f"v_lshl_add_u32 v{vT+4}, v{vT+1}, 3, v{vT+4}", f"v_add_u32 v{vT+4}, s{sWl}, v{vT+4}", Op("s", lambda E: E.wait_vm("wo"))]
        for mm in range(4):
            tw.append(Op("m", lambda E, mm=mm: E.lds(f"ds_read_b64_tr_b16 {v2(FFT+4*mm)}, v{vT+4} offset:{L_SP + mm*32}", "wot")))
            tw.append(Op("m", lambda E, mm=mm: E.lds(f"ds_read_b64_tr_b16 {v2(FFT+4*mm+2)}, v{vT+4} offset:{L_SP + mm*32 + 2048}", "wot")))
        tw += [f"s_lshl_b32 s{sa}, s{sM}, 19", f"s_lshr_b32 s{sb}, s2, 1", f"s_lshl_b32 s{sb}, s{sb}, 12", f"s_add_u32 s{sa}, s{sa}, s{sb}",
               f"s_add_u32 s{sa}, s{sa}, {hex(WS_WOF)}", 4, Op("s", lambda E: E.wait_lg("wot"))]
        for mm in range(4):
            tw.append(Op("m", lambda E, mm=mm: E.vmem(f"buffer_store_dwordx4 {v4(FFT+4*mm)}, v{vL16}, {s4(SWS)}, s{sa} offen offset:{mm*1024}{sflag}", "st")))
            tw.append(2)
        gW, left = W.chain(tw, 5 * 64 + 2); assert not left
        assert gW < 5 * 64 + BARPOS + 30
    if wqt:
        tq = [f"v_lshrrev_b32 v{vA0}, 1, v{vLane}", f"v_lshlrev_b32 v{vA0}, 13, v{vA0}", f"v_and_b32 v{vA1}, 1, v{vLane}",
              f"v_lshl_add_u32 v{vA0}, v{vA1}, 7, v{vA0}",
              f"s_mov_b32 s{SA}, s8", f"s_and_b32 s{SA+1}, s9, 0xffff", f"s_mov_b32 s{SA+2}, 0x400000",
              Op("m", lambda E: E.vmem(f"buffer_load_dword v{vA1}, v{vA0}, {s4(SA)}, s{sU5} offen{tflag}", "t"))]
        W.chain(tq, P1END + 11 * 16 + 2)
    F = [140, 148]; D = [156, 164]; WRF = 140
    Sm = [172, 173]; Tm = [174, 175]; MEAN = [vT + 6, vT + 7]; MB = [vW + 8, vW + 9]; AD = vW + 10
    R2 = range(2)
    ln = [Op("s", lambda E: E.wait_vm("ln"))]
    for rr, X in enumerate((X0, X1)):
        for k in range(4): ln += [f"v_lshlrev_b32 v{F[rr]+2*k}, 16, v{X+k}", f"v_and_b32 v{F[rr]+2*k+1}, 0xffff0000, v{X+k}"]
    ln += [f"v_add_f32 v{Sm[rr]}, v{F[rr]}, v{F[rr]+1}" for rr in R2]
    for k in range(2, 8): ln += [f"v_add_f32 v{Sm[rr]}, v{Sm[rr]}, v{F[rr]+k}" for rr in R2]
    ln += wsum_ops(Sm, Tm)
    ln += [f"v_mul_f32 v{MEAN[rr]}, 0x3b000000, v{Sm[rr]}" for rr in R2]
    for k in range(8): ln += [f"v_sub_f32 v{D[rr]+k}, v{F[rr]+k}, v{MEAN[rr]}" for rr in R2]
    ln += [f"v_mul_f32 v{Sm[rr]}, v{D[rr]}, v{D[rr]}" for rr in R2]
    for k in range(1, 8): ln += [f"v_fmac_f32 v{Sm[rr]}, v{D[rr]+k}, v{D[rr]+k}" for rr in R2]
    ln += wsum_ops(Sm, Tm)
    ln += [f"v_mul_f32 v{Sm[rr]}, 0x3b000000, v{Sm[rr]}" for rr in R2]
    ln += [f"v_cvt_pk_bf16_f32 v{Tm[rr]}, v{Sm[rr]}, v{MEAN[rr]}" for rr in R2]
    ln += [f"v_and_b32 v{MB[rr]}, 0xffff0000, v{Tm[rr]}" for rr in R2]
    ln += [f"v_lshlrev_b32 v{Sm[rr]}, 16, v{Tm[rr]}" for rr in R2]
    ln += [f"v_add_f32 v{Sm[rr]}, 0x3727c5ac, v{Sm[rr]}" for rr in R2]
    ln += [f"v_cvt_pk_bf16_f32 v{Sm[rr]}, v{Sm[rr]}, v{Sm[rr]}" for rr in R2]
    ln += [f"v_lshlrev_b32 v{Sm[rr]}, 16, v{Sm[rr]}" for rr in R2]
    ln += [f"v_sqrt_f32 v{Sm[rr]}, v{Sm[rr]}" for rr in R2] + [1]
    ln += [f"v_cvt_pk_bf16_f32 v{Sm[rr]}, v{Sm[rr]}, v{Sm[rr]}" for rr in R2]
    ln += [f"v_lshlrev_b32 v{Sm[rr]}, 16, v{Sm[rr]}" for rr in R2]
    ln += [f"v_rcp_f32 v{Tm[rr]}, v{Sm[rr]}" for rr in R2]
    for k in range(8): ln += [f"v_sub_f32 v{D[rr]+k}, v{F[rr]+k}, v{MB[rr]}" for rr in R2]
    for k in range(4): ln += [f"v_cvt_pk_bf16_f32 v{F[rr]+k}, v{D[rr]+2*k}, v{D[rr]+2*k+1}" for rr in R2]
    for k in range(4):
        for rr in R2: ln += [f"v_lshlrev_b32 v{D[rr]+2*k}, 16, v{F[rr]+k}", f"v_and_b32 v{D[rr]+2*k+1}, 0xffff0000, v{F[rr]+k}"]
    for k in range(8): ln += [f"v_mul_f32 v{F[rr]+k}, v{D[rr]+k}, v{Tm[rr]}" for rr in R2]
    for k in range(8): ln += [f"v_fma_f32 v{D[rr]+k}, -v{F[rr]+k}, v{Sm[rr]}, v{D[rr]+k}" for rr in R2]
    for k in range(8): ln += [f"v_fmac_f32 v{F[rr]+k}, v{D[rr]+k}, v{Tm[rr]}" for rr in R2]
    for k in range(4): ln += [f"v_cvt_pk_bf16_f32 v{X+k}, v{F[rr]+2*k}, v{F[rr]+2*k+1}" for rr, X in enumerate((X0, X1))]
    ln += [f"v_lshrrev_b32 v{AD}, 2, v{vLane}", f"v_lshlrev_b32 v{AD}, 12, v{AD}", f"v_and_b32 v{AD+1}, 3, v{vLane}", f"v_lshl_add_u32 v{AD}, v{AD+1}, 8, v{AD}",
           f"s_lshr_b32 s{sL1}, s2, 3", f"s_lshl_b32 s{sL1}, s{sL1}, 16", f"s_bfe_u32 s{sL2}, s2, 0x20001", f"s_lshl_b32 s{sL2}, s{sL2}, 10",
           f"s_add_u32 s{sL1}, s{sL1}, s{sL2}", f"s_and_b32 s{sL2}, s2, 1", f"s_lshl_b32 s{sL2}, s{sL2}, 7", f"s_add_u32 s{sL1}, s{sL1}, s{sL2}",
           f"s_lshl_b32 s{sL2}, s{sW}, 5", f"s_add_u32 s{sL1}, s{sL1}, s{sL2}",
           Op("m", lambda E: E.vmem(f"buffer_store_dwordx4 {v4(X0)}, v{AD}, {s4(SWS)}, s{sL1} offen{sflag}", "st"), 1),
           Op("m", lambda E: E.vmem(f"buffer_store_dwordx4 {v4(X1)}, v{AD}, {s4(SWS)}, s{sL1} offen offset:16{sflag}", "st"), 1)]
    for k in range(4): ln += [f"v_lshlrev_b32 v{WRF+2*k}, 16, v{WR+k}", f"v_and_b32 v{WRF+2*k+1}, 0xffff0000, v{WR+k}"]
    for k in range(4):
        for rr, X in enumerate((X0, X1)): ln += [f"v_lshlrev_b32 v{D[rr]+2*k}, 16, v{X+k}", f"v_and_b32 v{D[rr]+2*k+1}, 0xffff0000, v{X+k}"]
    ln += [f"v_mul_f32 v{Sm[rr]}, v{D[rr]}, v{WRF}" for rr in R2]
    for k in range(1, 8): ln += [f"v_fmac_f32 v{Sm[rr]}, v{D[rr]+k}, v{WRF+k}" for rr in R2]
    ln += wsum_ops(Sm, Tm)
    ln += [f"v_cvt_pk_bf16_f32 v{Tm[0]}, v{Sm[0]}, v{Sm[1]}", f"v_lshlrev_b32 v{MEAN[0]}, 16, v{Tm[0]}", f"v_and_b32 v{MEAN[1]}, 0xffff0000, v{Tm[0]}",
           f"s_lshl_b32 s{sL1}, s2, 3", f"s_lshl_b32 s{sL2}, s{sW}, 1", f"s_add_u32 s{sL1}, s{sL1}, s{sL2}", f"s_sub_u32 s{sL3}, 2047, s{sL1}", f"s_sub_u32 s{sL4}, 2046, s{sL1}"]
    ln += [f"v_add_f32 v{MEAN[rr]}, 0, v{MEAN[rr]}" for rr in R2]
    ln += [f"v_ashrrev_i32 v{Sm[rr]}, 31, v{MEAN[rr]}" for rr in R2]
    ln += [f"v_or_b32 v{Sm[rr]}, 0x80000000, v{Sm[rr]}" for rr in R2]
    ln += [f"v_xor_b32 v{MEAN[rr]}, v{MEAN[rr]}, v{Sm[rr]}" for rr in R2]
    ln += [f"v_and_b32 v{MEAN[rr]}, 0xffff0000, v{MEAN[rr]}" for rr in R2]
    ln += [f"v_or_b32 v{MEAN[0]}, s{sL3}, v{MEAN[0]}", f"v_or_b32 v{MEAN[1]}, s{sL4}, v{MEAN[1]}", f"v_mov_b32 v{AD}, 0",
           f"s_lshl_b32 s{sL1}, s{sL1}, 2", f"s_add_u32 s{sL1}, s{sL1}, {hex(WS_RS)}",
           Op("m", lambda E: E.vmem(f"buffer_store_dwordx2 {v2(MEAN[0])}, v{AD}, {s4(SWS)}, s{sL1} offen{sflag}", "st"), 1)]
    gL, lnleft = W.chain(ln, 64 + BARPOS + 2, B7 - 2)
    assert not lnleft
    print(f"k1: gK {gK} gT {gT} gL {gL} (P1END {P1END} P2AEND {P2AEND} NTOT {NTOT})")
    for q, sl in enumerate((128, 256, 384, P1END, P2AEND)):
        W.pre(sl, (lambda q: lambda E: stamp(E, 5 + q))(q))
    W.emit(E)
    stamp(E, 10)
    put(E, lnleft)
    E.e("s_nop 7")
    for n in range(2): put(E, pack_ops(VB(2 * n, 3), VB(2 * n + 1, 3), sVst, n * 8 + 7))
    if PROF["on"]:
        stamp(E, 11)
        E.e("s_waitcnt vmcnt(0)")
    stamp_flush(E, 0, 4, SWS, sW, 64)
    E.e(f"{name}_end:")
    E.e("s_endpgm")
    for p in check(E.L, name): print("HAZARD", p)
    return head(name) + E.text(), kd(name, 512, 256, 102)

if __name__ == "__main__":
    t, k = gen_k1()
    print(len(t.splitlines()))
```
